```python
import torch

def _softmax(x, axis=-1):
    return torch.softmax(x, dim=axis)
def _gelu(x):
    return torch.nn.functional.gelu(x, approximate="tanh")
def _silu(x):
    return torch.nn.functional.silu(x)
def _sigmoid(x):
    return torch.sigmoid(x)
def _layernorm(x, axis=-1, eps=1e-5):
    m = x.mean(dim=axis, keepdim=True)
    v = x.var(dim=axis, keepdim=True, unbiased=False)
    return (x - m) / torch.sqrt(v + eps)
def _scatter_add(tgt, idx, src, axis=0):
    return tgt.clone().index_add_(axis, idx, src)
def _segment_sum(src, seg, n):
    out = torch.zeros((n,) + src.shape[1:], dtype=src.dtype)
    return out.index_add_(0, seg, src)
def _pad(x, pw):
    flat = tuple(v for pair in reversed(pw) for v in pair)
    return torch.nn.functional.pad(x, flat)

kernel_name = 'sequential_preLN__grouped_kv_mqa__moe_arch_mod__prompt'

def setup_inputs():

    _w = (lambda a: (lambda t: t.to(torch.bfloat16) if t.is_floating_point() else t)(torch.as_tensor(a)))
    def _A_setup():
        B, S, D, H = 1, 2048, 1024, 32
        Dh = D // H
        return {
            "x": _w((lambda *s: torch.randn(*s, dtype=torch.bfloat16) * 0.05)(B, S, D)),
            "wq": _w((lambda *s: torch.randn(*s, dtype=torch.bfloat16) * 0.05)(D, H * Dh)),
            "wk": _w((lambda *s: torch.randn(*s, dtype=torch.bfloat16) * 0.05)(D, Dh)),
            "wv": _w((lambda *s: torch.randn(*s, dtype=torch.bfloat16) * 0.05)(D, Dh)),
            "wo": _w((lambda *s: torch.randn(*s, dtype=torch.bfloat16) * 0.05)(H * Dh, D)),
        }
    _A_in = _A_setup()

    def _B_setup():
        B, S, D, F, C = 1, 2048, 1024, 3584, 1
        return {
            "x": _w((lambda *s: torch.randn(*s, dtype=torch.bfloat16) * 0.05)(B, S, D)),
            "w_r": _w((lambda *s: torch.randn(*s, dtype=torch.bfloat16) * 0.05)(D)),
            "w_gate": _w((lambda *s: torch.randn(*s, dtype=torch.bfloat16) * 0.05)(D, F)),
            "w_up": _w((lambda *s: torch.randn(*s, dtype=torch.bfloat16) * 0.05)(D, F)),
            "w_down": _w((lambda *s: torch.randn(*s, dtype=torch.bfloat16) * 0.05)(F, D)),
        }
    _B_in = _B_setup()

    return {
        "A_x": _A_in["x"],
        "A_wq": _A_in["wq"],
        "A_wk": _A_in["wk"],
        "A_wv": _A_in["wv"],
        "A_wo": _A_in["wo"],
        "B_x": _B_in["x"],
        "B_w_r": _B_in["w_r"],
        "B_w_gate": _B_in["w_gate"],
        "B_w_up": _B_in["w_up"],
        "B_w_down": _B_in["w_down"],
    }

def reference(A_x, A_wq, A_wk, A_wv, A_wo, B_x, B_w_r, B_w_gate, B_w_up, B_w_down):
    def _A_ref(x, wq, wk, wv, wo):
        B, S, D = x.shape
        H = 32
        Dh = D // H
        q = (lambda x, *d: x.permute(*d))((x @ wq).reshape(B, S, H, Dh), 0, 2, 1, 3)
        k = x @ wk
        v = x @ wv
        scores = torch.einsum("bhqd,bkd->bhqk", q, k) * (Dh ** -0.5)
        p = _softmax(scores, axis=-1)
        o = torch.einsum("bhqk,bkd->bhqd", p, v)
        return (lambda x, *d: x.permute(*d))(o, 0, 2, 1, 3).reshape(B, S, H * Dh) @ wo

    def _B_ref(x, w_r, w_gate, w_up, w_down):
        B, S, D = x.shape
        C = 1
        r = x @ w_r
        idx = torch.argsort(-r, axis=-1)[:, :C]
        idx_e = (lambda x, n, axis: torch.repeat_interleave(x, n, dim=axis))(idx.reshape(B, C, 1), D, axis=2)
        x_sel = (lambda x, i, axis: torch.take_along_dim(x, i, dim=axis))(x, idx_e, axis=1)
        g = _silu(x_sel @ w_gate)
        u = x_sel @ w_up
        y = (g * u) @ w_down
        r_sel = _sigmoid((lambda x, i, axis: torch.take_along_dim(x, i, dim=axis))(r, idx, axis=1))
        y = y * r_sel.reshape(B, C, 1)
        b_off = (torch.arange(B) * S).reshape(B, 1)
        flat_idx = (idx + b_off).reshape(B * C)
        zero = (x * 0.0).reshape(B * S, D)
        upd = _scatter_add(zero, flat_idx, y.reshape(B * C, D), axis=0)
        return x + upd.reshape(B, S, D)

    x = A_x
    h = x + _A_ref(_layernorm(x, axis=-1), A_wq, A_wk, A_wv, A_wo)
    h2 = h + _B_ref(_layernorm(h, axis=-1), B_w_r, B_w_gate, B_w_up, B_w_down)
    return h2
```

```python
import re

class Regs:
    def __init__(self, n, start=0):
        self.n = n
        self.used = [False] * n
        for i in range(start): self.used[i] = True
        self.sizes = {}
        self.high = start
    def alloc(self, k=1, align=None, at=None, lo=0):
        if align is None: align = 1 if k == 1 else (2 if k < 4 else 4)
        rng = [at] if at is not None else range((lo + align - 1) // align * align, self.n - k + 1, align)
        for b in rng:
            if not any(self.used[b:b + k]):
                for i in range(b, b + k): self.used[i] = True
                self.sizes[b] = k
                self.high = max(self.high, b + k)
                return b
        raise RuntimeError(f"out of registers for {k}")
    def free(self, *bs):
        for b in bs:
            k = self.sizes.pop(b)
            for i in range(b, b + k): self.used[i] = False
    def nfree(self): return self.used.count(False)

def vr(b, n=1): return f"v{b}" if n == 1 else f"v[{b}:{b+n-1}]"
def ar(b, n=1): return f"a{b}" if n == 1 else f"a[{b}:{b+n-1}]"
def sr(b, n=1): return f"s{b}" if n == 1 else f"s[{b}:{b+n-1}]"

_reg_re = re.compile(r"^(-?)(abs\()?([vas])(?:(\d+)|\[(\d+):(\d+)\])\)?$")
def parse_reg(tok):
    tok = tok.strip()
    if tok in ("vcc", "vcc_lo", "vcc_hi"): return {("s", "vcc")}
    if tok in ("exec", "exec_lo", "exec_hi"): return {("s", "exec")}
    if tok == "m0": return {("s", "m0")}
    m = _reg_re.match(tok)
    if not m: return set()
    k = m.group(3)
    if m.group(4) is not None: return {(k, int(m.group(4)))}
    return {(k, i) for i in range(int(m.group(5)), int(m.group(6)) + 1)}

TRANS = ("v_exp_f32", "v_log_f32", "v_rcp_f32", "v_rsq_f32", "v_sqrt_f32", "v_sin_f32", "v_cos_f32")
class Ins:
    def __init__(self, text):
        self.text = text
        t = text.split(";")[0].strip()
        self.op = t.split()[0] if t else ""
        rest = t[len(self.op):].strip()
        ops = [o.strip() for o in re.split(r",(?![^\[]*\])", rest)] if rest else []
        self.mods = ""
        if ops:
            parts = ops[-1].split()
            if len(parts) > 1:
                ops[-1] = parts[0]; self.mods = " ".join(parts[1:])
        self.ops = ops
        op = self.op
        self.is_label = op.endswith(":")
        self.is_dir = op.startswith(".")
        self.is_mfma = op.startswith("v_mfma") or op.startswith("v_smfmac")
        self.is_valu = op.startswith("v_") and not self.is_mfma
        self.is_dot = op.startswith("v_dot")
        self.is_trans = op.replace("_e32", "").replace("_e64", "") in TRANS
        self.is_vmem = op.startswith(("buffer_", "global_"))
        self.is_ds = op.startswith("ds_")
        self.is_salu = op.startswith("s_")
        self.is_dpp = any(k in self.mods for k in ("row_", "quad_perm", "wave_"))
        self.is_perml = op.startswith("v_permlane")
        self.is_rdlane = op.startswith(("v_readlane", "v_readfirstlane", "v_writelane"))
        R = [parse_reg(o) for o in ops]
        self.w = set(); self.r = set(); self.srcC = set(); self.srcAB = set(); self.passes = 0
        self.stdata = set()
        if self.is_mfma:
            self.w = R[0]
            self.srcAB = R[1] | R[2]
            if op.startswith("v_smfmac"):
                self.srcC = R[0]; self.srcAB |= R[3]
            else: self.srcC = R[3]
            self.r = self.srcAB | self.srcC
            self.passes = 8 if "32x32" in op else 4
        elif self.is_valu:
            if self.is_perml:
                self.w = R[0] | R[1]; self.r = R[0] | R[1]
            elif op.startswith("v_cmp"):
                self.w = R[0]; self.r = set().union(*R[1:])
                if op.startswith("v_cmpx"): self.w |= {("s", "exec")}
            elif op.startswith(("v_add_co", "v_sub_co", "v_addc_co", "v_subb_co")):
                self.w = R[0] | R[1]; self.r = set().union(*R[2:])
            elif op == "v_nop": pass
            else:
                self.w = R[0]; self.r = set().union(*R[1:]) if len(R) > 1 else set()
                if op.startswith(("v_fmac", "v_dot2c", "v_writelane")) or self.is_dpp or "UNUSED_PRESERVE" in self.mods: self.r |= R[0]
        elif self.is_vmem:
            if "_load" in op:
                if " lds" in (" " + self.mods) or "_lds_" in op:
                    self.r = set().union(*R) | {("s", "m0")}
                else:
                    self.w = R[0]; self.r = set().union(*R[1:])
            elif op in ("buffer_inv", "buffer_wbl2"): pass
            else:
                self.r = set().union(*R)
                d = R[0] if op.startswith("buffer_") else R[1]
                if "x3" in op or "x4" in op: self.stdata = d
        elif self.is_ds:
            if op.startswith("ds_read") or op.startswith("ds_bperm") or op.startswith("ds_swz") or op.startswith("ds_swizzle"):
                self.w = R[0]; self.r = set().union(*R[1:])
            else: self.r = set().union(*R)
        elif self.is_salu:
            if op.startswith(("s_cmp", "s_cbranch", "s_branch", "s_waitcnt", "s_nop", "s_barrier", "s_endpgm", "s_setprio", "s_bitcmp", "s_setpc")):
                self.r = set().union(*R) if R else set()
            elif R:
                self.w = R[0]; self.r = set().union(*R[1:]) if len(R) > 1 else set()
                if "saveexec" in op: self.w |= {("s", "exec")}
    def states(self):
        if self.is_label or self.is_dir or not self.op: return 0
        if self.op == "s_nop": return int(self.ops[0], 0) + 1
        return 1

def vregs(s): return {x for x in s if x[0] in "va"}
def sregs(s): return {x for x in s if x[0] == "s"}

def need(p, c):
    n = 0
    if p.is_mfma:
        big = {4: (6, 8, 3), 8: (10, 12, 7)}[p.passes]
        if c.is_mfma:
            if p.w & c.srcAB: n = max(n, big[1])
            if p.w & c.srcC:
                if not (p.w == c.srcC and p.passes == c.passes): n = max(n, big[0])
            elif p.w & c.w: n = max(n, big[0]) if p.w != c.w or p.passes != c.passes else n
        else:
            if p.w & (c.r | c.w): n = max(n, big[1])
            if c.is_valu and (p.srcC & c.w): n = max(n, big[2])
    if p.is_valu:
        pv = vregs(p.w); ps = sregs(p.w)
        if c.is_mfma and (pv & c.r): n = max(n, 3 if p.is_dot else 2)
        if c.is_mfma and ("s", "exec") in ps: n = max(n, 4)
        if p.is_dot and (pv & (c.r | c.w)) and not (c.is_dot and c.op == p.op and not (pv & (vregs(c.r) - c.w))): n = max(n, 3)
        if c.is_valu:
            if c.is_dpp and (pv & c.r): n = max(n, 2)
            if c.is_dpp and ("s", "exec") in ps: n = max(n, 5)
            if c.is_perml and (pv & c.r): n = max(n, 2)
            if c.is_rdlane and (pv & c.r): n = max(n, 1)
            if c.is_rdlane and (ps & c.r): n = max(n, 4)
            if ps & c.r: n = max(n, 2)
            if p.is_trans and (pv & c.r) and not c.is_trans: n = max(n, 1)
            if ("sdwa" in p.op or "op_sel" in p.mods) and (pv & (c.r | c.w)): n = max(n, 1)
        if p.is_trans and (pv & c.r) and (c.is_vmem or c.is_ds): n = max(n, 1)
        if c.is_vmem and (ps & c.r): n = max(n, 5)
        if c.is_salu and (ps & c.r): n = max(n, 1)
        if c.op.startswith("s_cbranch_vcc") and ("s", "vcc") in ps: n = max(n, 1)
    if p.is_vmem and p.stdata and (p.stdata & c.w): n = max(n, 2)
    if p.is_salu and ("s", "m0") in p.w and c.is_vmem and ("s", "m0") in c.r: n = max(n, 1)
    return n

def fix_hazards(lines, verbose=False):
    out = []; hist = []; added = 0
    for ln in lines:
        ins = Ins(ln)
        if ins.op and not ins.is_label and not ins.is_dir:
            dist = 0; short = 0
            for p in reversed(hist):
                nd = need(p, ins)
                if nd > dist: short = max(short, nd - dist)
                dist += p.states()
                if dist >= 20: break
            if short:
                nop = Ins(f"s_nop {short-1}")
                out.append(f"    s_nop {short-1}"); hist.append(nop); added += 1
                if verbose: print(f"hazard: +{short} before: {ln.strip()}")
            hist.append(ins)
            if len(hist) > 40: hist = hist[-24:]
        out.append(ln)
    return out, added

class Asm:
    def __init__(self):
        self.lines = []
        self.vm = 0; self.lg = 0
        self.nlab = 0
    def __call__(self, s):
        for l in s.strip("\n").split("\n"):
            l = l.strip()
            if not l: continue
            self.lines.append(l if l.endswith(":") else "    " + l)
            op = l.split()[0]
            if op.startswith(("buffer_", "global_")): self.vm += 1
            if op.startswith("ds_"): self.lg += 1
    def c(self, s): self.lines.append("    ; " + s)
    def label(self, base="L"):
        self.nlab += 1
        return f"{base}_{self.nlab}"
    def tv(self): return self.vm
    def tl(self): return self.lg
    def wait_vm(self, t):
        n = self.vm - t
        assert 0 <= n
        self(f"s_waitcnt vmcnt({min(n, 62)})")
    def wait_lg(self, t):
        n = self.lg - t
        assert 0 <= n
        self(f"s_waitcnt lgkmcnt({min(n, 14)})")
```

```python
import sys, math, struct
from asmlib import *

NAME = "sequential_preLN__grouped_kv_mqa__moe_arch_mod__prompt"

def f32(x): return "0x%08x" % struct.unpack("<I", struct.pack("<f", x))[0]

WS_KV = 0x000000
WS_FL = 0x040000
WS_CLR = 0x080000
WS_ST = WS_CLR + 0x00000
WS_Y = WS_CLR + 0x40000
WS_GU = WS_CLR + 0x80000
WS_HN = WS_CLR + 0xA0000
WS_SC = WS_CLR + 0xC0000
WS_OF = WS_CLR + 0xC8000
WS_O = 0x200000
WS_TS = 0x700000
WS_SIZE = 0x800000

SLOT = 24576
SCR = 6 * SLOT
SCR_A, SCR_C, SCR_ST, SCR_T = SCR, SCR + 8192, SCR + 8192 + 512, SCR + 8192 + 1024
L_G, L_U, L_D = 65536, 98304, 131072
HT, HTS = 0, 272
SP = 17408
MR = SP + 4096
XS = MR + 1024
ACT = XS + 512
SPIN = 400000

sW = 3
X, WQ, WKV, WO, WR, GA, UP, DN, OUT, DBG, WS, DM = 4, 8, 12, 16, 20, 24, 28, 32, 36, 40, 44, 48
sRB, sHG, sLID, sXG, sCB, sRED, sKQ, sFAST = 52, 53, 54, 55, 56, 57, 58, 59
sXCC, sCNT, sT0, sT1 = 60, 61, 62, 63
EX = 96

def build(opt):
    A = Asm()
    V = Regs(256, 2)
    stamps = opt.get("stamps", False)
    nst = [0]
    def stamp(name):
        if not stamps: return
        i = nst[0]; nst[0] += 1
        opt.setdefault("stamp_names", []).append(name)
        A(f"""s_memrealtime s[98:99]
              s_waitcnt lgkmcnt(0)
              v_writelane_b32 v255, s98, {i}""")
    if stamps: V.alloc(1, at=255)
    def srd(base, ptr, size):
        A(f"s_mov_b64 {sr(base,2)}, {sr(ptr,2)}\ns_mov_b32 s{base+2}, {size}\ns_mov_b32 s{base+3}, 0x20000")
    def spin_head(lab):
        A(f"s_mov_b32 s{sCNT}, 0\n{lab}:")
    def spin_tail(lab):
        done = A.label("L_done")
        A(f"""s_cbranch_vccz {done}
              s_add_u32 s{sCNT}, s{sCNT}, 1
              s_cmp_lt_u32 s{sCNT}, {SPIN}
              s_cbranch_scc1 {lab}
              {done}:""")
    def any_sentinel(regs, tmp):
        regs = list(regs)
        if len(regs) == 1:
            A(f"v_cmp_eq_u32 vcc, -1, v{regs[0]}"); return
        cur = regs.pop(0)
        while regs:
            if len(regs) >= 2:
                A(f"v_max3_u32 v{tmp}, v{cur}, v{regs[0]}, v{regs[1]}"); regs = regs[2:]
            else:
                A(f"v_max_u32 v{tmp}, v{cur}, v{regs[0]}"); regs = regs[1:]
            cur = tmp
        A(f"v_cmp_eq_u32 vcc, -1, v{tmp}")
    def both_paths(fn):
        slow, done = A.label("L_slow"), A.label("L_join")
        v0 = A.vm
        A(f"s_cmp_eq_u32 s{sFAST}, 0\ns_cbranch_scc1 {slow}")
        fn("")
        A(f"s_branch {done}\n{slow}:")
        A.vm = v0
        fn(" sc1")
        A(f"{done}:")
    def rbf(dst, src):
        A(f"v_cvt_pk_bf16_f32 v{dst}, v{src}, v{src}\nv_and_b32 v{dst}, 0xffff0000, v{dst}")
    def ln_chain(s1, s2, m, rs, t):
        A(f"""v_mul_f32 v{m}, {f32(1/1024)}, v{s1}
              v_mul_f32 v{t}, {f32(1/1024)}, v{s2}
              v_fma_f32 v{t}, -v{m}, v{m}, v{t}
              v_max_f32 v{t}, 0, v{t}""")
        rbf(t, t)
        A(f"v_add_f32 v{t}, {f32(1e-5)}, v{t}")
        rbf(t, t)
        A(f"v_sqrt_f32 v{t}, v{t}")
        rbf(m, m)
        rbf(t, t)
        A(f"v_rcp_f32 v{rs}, v{t}")

    A.c("---- entry: ids, descriptors ----")
    A(f"""s_cmp_ge_u32 s2, 256
          s_cbranch_scc1 L_end
          s_load_dwordx16 s[64:79], s[0:1], 0
          s_load_dwordx8 s[80:87], s[0:1], 64
          s_load_dwordx2 s[88:89], s[0:1], 96
          v_and_b32 v1, 63, v0
          v_lshrrev_b32 v2, 6, v0
          s_and_b32 s{sXG}, s2, 7
          v_readfirstlane_b32 s{sW}, v2
          s_lshr_b32 s{sHG}, s2, 5
          s_bfe_u32 s{sT0}, s2, 0x20003
          s_lshl_b32 s{sRB}, s{sXG}, 2
          s_add_u32 s{sRB}, s{sRB}, s{sT0}
          s_lshl_b32 s{sLID}, s{sRB}, 3
          s_add_u32 s{sLID}, s{sLID}, s{sHG}
          s_and_b32 s{sKQ}, s{sHG}, 3
          s_getreg_b32 s{sXCC}, hwreg(HW_REG_XCC_ID)
          s_and_b32 s{sXCC}, s{sXCC}, 0xff
          s_or_b32 s{sXCC}, s{sXCC}, 0x100""")
    if stamps: A("v_mov_b32 v255, 0")
    t0, t1, t2, t3 = V.alloc(), V.alloc(), V.alloc(), V.alloc()
    vL16 = V.alloc(); vX = V.alloc(8); vWk = V.alloc(); vD = V.alloc(8, at=240); vM1 = V.alloc(4)
    A.c("x16 DMA offsets")
    A(f"""v_lshlrev_b32 v{vL16}, 4, v1
          v_lshrrev_b32 v{t0}, 5, v1
          v_and_b32 v{t1}, 31, v1
          v_xor_b32 v{t1}, v{t1}, v{t0}
          v_lshlrev_b32 v{t1}, 4, v{t1}
          v_lshl_add_u32 v{vX}, v{t0}, 11, v{t1}""")
    for i in range(1, 8):
        A(f"v_xor_b32 v{vX+i}, {32*i}, v{vX}\nv_add_u32 v{vX+i}, {4096*i - 1024*(i&3)}, v{vX+i}")
    A(f"""v_lshlrev_b32 v{t0}, 5, v{t0}
          v_xor_b32 v{vWk}, v{vL16}, v{t0}""")
    for i in range(4): A(f"v_mov_b32 v{vM1+i}, -1")
    A(f"""s_lshr_b32 s90, s{sHG}, 1
          s_lshl_b32 s90, s90, 15
          s_lshl_b32 s91, s{sRB}, 17
          s_add_u32 s90, s90, s91
          s_lshl_b32 s92, s{sW}, 9
          s_add_u32 s90, s90, s92
          s_mul_i32 s93, s{sW}, {SLOT}
          s_lshl_b32 s94, s{sW}, 14
          s_waitcnt lgkmcnt(0)""")
    stamp("karg")
    srd(X, 64, 0x400000)
    srd(WS, 88, WS_SIZE)
    A.c("workgroups 0..7 (wave 3) clear the flag lines first")
    A(f"""s_cmp_eq_u32 s{sW}, 3
          s_cselect_b32 s{sT0}, s2, 255
          s_cmp_lt_u32 s{sT0}, 8
          s_cbranch_scc0 L_noclr
          s_lshl_b32 s{sT0}, s2, 12
          s_add_u32 s{sT0}, s{sT0}, {WS_FL}""")
    for i in range(4): A(f"buffer_store_dwordx4 {vr(vM1,4)}, v{vL16}, {sr(WS,4)}, s{sT0} offen offset:{1024*i} sc1")
    A("L_noclr:")
    A(f"s_mov_b32 m0, s93")
    A(f"""s_bitcmp1_b32 s{sHG}, 0
          s_cselect_b64 {sr(WKV,2)}, s[70:71], s[68:69]""")
    for i in range(8):
        if i == 4: A("s_add_u32 m0, s93, 4096\ns_mov_b32 s14, 0x10000")
        A(f"buffer_load_dwordx4 v{vX+i}, {sr(X,4)}, s90 offen offset:{1024*(i&3)} lds")
    A("s_mov_b32 s15, 0x20000")
    for i in range(16):
        if i % 4 == 0:
            A(f"s_add_u32 m0, s93, {8192 + 1024*i}")
            A(f"s_add_u32 s95, s94, {1024*i}")
        A(f"buffer_load_dwordx4 v{vWk}, {sr(WKV,4)}, s95 offen offset:{1024*(i&3)} lds")
    A.c("Q-chunk DMA setup: wave 0 -> x rows, waves 1,2 -> wq rows")
    sBase, sCur, sStep, sMask, sW8 = 90, 92, 94, 95, 93
    A(f"""s_cmp_eq_u32 s{sW}, 0
          s_cselect_b64 {sr(DM,2)}, s[64:65], s[66:67]
          s_mov_b32 s{DM+2}, 0x200000
          s_cmov_b32 s{DM+2}, 0x400000
          s_mov_b32 s{DM+3}, 0x20000
          s_mov_b32 s{sStep}, 0x20000
          s_cmov_b32 s{sStep}, 128
          s_mov_b32 s{sMask}, 0x1fffff
          s_cmov_b32 s{sMask}, 2047
          s_cselect_b32 s{sT0}, 64, 0
          s_mov_b32 s{sT1}, 8192
          s_cmov_b32 s{sT1}, 16384
          s_cselect_b64 vcc, -1, 0
          v_lshrrev_b32 v{t0}, 4, v1
          v_and_b32 v{t1}, 7, v1
          v_xor_b32 v{t1}, v{t1}, v{t0}
          v_lshlrev_b32 v{t1}, 4, v{t1}
          v_lshrrev_b32 v{t2}, 3, v1
          v_lshl_add_u32 v{t1}, v{t2}, 11, v{t1}
          v_and_b32 v{t2}, 15, v1
          v_lshlrev_b32 v{t3}, 2, v{t0}
          v_xor_b32 v{t2}, v{t2}, v{t3}
          v_lshlrev_b32 v{t2}, 4, v{t2}
          v_lshl_add_u32 v{t2}, v{t0}, 11, v{t2}
          v_cndmask_b32 v{vD}, v{t2}, v{t1}, vcc
          v_xor_b32 v{t0}, s{sT0}, v{vD}""")
    for i in range(1, 8):
        A(f"s_mul_i32 s{sT0}, s{sT1}, {i}")
        if i & 3: A(f"s_sub_u32 s{sT0}, s{sT0}, {1024*(i&3)}")
        A(f"v_add_u32 v{vD+i}, s{sT0}, v{t0 if i & 1 else vD}")
    A(f"""s_lshl_b32 s{sT0}, s{sHG}, 8
          s_lshl_b32 s{sT1}, s{sW}, 16
          s_add_u32 s{sT0}, s{sT0}, s{sT1}
          s_sub_u32 s{sT0}, s{sT0}, 0x10000
          s_cmp_eq_u32 s{sW}, 0
          s_cselect_b32 s{sBase}, s91, s{sT0}
          s_lshl_b32 s{sT0}, s{sHG}, 1
          s_mul_i32 s{sCur}, s{sT0}, s{sStep}
          s_lshl_b32 s{sW8}, s{sW}, 13""")
    if not opt.get("rot", True): A(f"s_mov_b32 s{sCur}, 0")
    def qdma(c):
        slot = (4 + c) % 6
        out = [f"s_add_u32 m0, s{sW8}, {slot*SLOT}", f"s_add_u32 s91, s{sBase}, s{sCur}"]
        for i in range(8):
            if i == 4: out += [f"s_add_u32 m0, s{sW8}, {slot*SLOT + 4096}", f"s_add_u32 s{sCur}, s{sCur}, s{sStep}"]
            out.append(f"buffer_load_dwordx4 v{vD+i}, {sr(DM,4)}, s91 offen offset:{1024*(i&3)} lds")
        out.append(f"s_and_b32 s{sCur}, s{sCur}, s{sMask}")
        return out
    srd(DBG, 86, 256)
    vGa = V.alloc(at=254)
    A(f"v_and_b32 v{vGa}, 7, v1\nv_lshlrev_b32 v{vGa}, 5, v{vGa}")
    A(f"s_cmp_eq_u32 s{sW}, 3\ns_cbranch_scc1 L_w3a")
    A("\n".join(qdma(0) + qdma(1)))
    A("s_branch L_w3b\nL_w3a:")
    A.c("wave 3: clear this workgroup's share of the sentinel region, warm L2 with the code, raise 'go'")
    A(f"""s_lshl_b32 s{sT0}, s2, 12
          s_add_u32 s{sT0}, s{sT0}, {WS_CLR}""")
    for i in range(4): A(f"buffer_store_dwordx4 {vr(vM1,4)}, v{vL16}, {sr(WS,4)}, s{sT0} offen offset:{1024*i} sc1")
    vP = V.alloc(2); vDum = V.alloc(at=230)
    A(f"""s_getpc_b64 s[100:101]
          L_pc:
          s_lshr_b32 s{sT0}, s2, 3
          s_lshl_b32 s{sT0}, s{sT0}, 4
          v_and_b32 v{t0}, 15, v1
          v_add_u32 v{t0}, s{sT0}, v{t0}
          v_lshlrev_b32 v{t0}, 7, v{t0}
          v_min_u32 v{t0}, L_end-L_pc, v{t0}
          v_mov_b32 v{vP+1}, s101
          v_add_co_u32 v{vP}, vcc, s100, v{t0}
          v_addc_co_u32 v{vP+1}, vcc, 0, v{vP+1}, vcc
          global_load_dword v{vDum}, {vr(vP,2)}, off
          s_cmp_lt_u32 s2, 8
          s_cbranch_scc0 L_w3b
          s_lshl_b32 s{sT0}, s2, 5
          v_mov_b32 v{t1}, 0
          s_waitcnt vmcnt(29)
          s_mov_b64 exec, 1
          buffer_store_dword v{vM1}, v{t1}, {sr(DBG,4)}, s{sT0} offen sc1
          s_mov_b64 exec, -1
          L_w3b:""")
    V.free(vP, vX, vWk, vM1)
    def kvwait(n012, n3):
        lab = A.label("L_kw")
        A(f"s_waitcnt vmcnt({n012})\ns_cmp_eq_u32 s{sW}, 3\ns_cbranch_scc0 {lab}\ns_waitcnt vmcnt({n3})\n{lab}:")
    A.c("remaining descriptors and MoE roles (while the first loads fly)")
    srd(WO, 72, 0x200000); srd(WR, 76, 2048); srd(OUT, 84, 0x400000)
    A(f"""s_and_b32 s{sT0}, s{sRB}, 3
          s_lshl_b32 s{sT0}, s{sT0}, 1
          s_lshr_b32 s{sT1}, s{sHG}, 2
          s_add_u32 s{sT0}, s{sT0}, s{sT1}
          s_mul_i32 s{sCB}, s{sXG}, 7
          s_add_u32 s{sCB}, s{sCB}, s{sT0}
          s_lshl_b32 s{sT1}, s{sXG}, 2
          s_add_u32 s{sT1}, s{sT1}, s{sKQ}
          s_cmp_eq_u32 s{sT0}, 7
          s_cselect_b32 s{sRED}, 1, 0
          s_cselect_b32 s{sCB}, s{sT1}, s{sCB}
          s_cselect_b32 s{sT0}, 0, 0x700000""")
    for b, p in ((GA, 78), (UP, 80), (DN, 82)): srd(b, p, f"s{sT0}")

    A.c("---- K/V stage: 16 rows x 32 columns per workgroup, K split over the waves ----")
    aX = V.alloc(4); aW = V.alloc(2); xf = V.alloc(32); wf = V.alloc(64); acc = V.alloc(8); cs = V.alloc(8)
    ones = V.alloc(4); st = V.alloc(2); aS = V.alloc(); aC = V.alloc(); aT = V.alloc()
    A(f"""s_mul_i32 s{sT0}, s{sW}, {SLOT}
          v_and_b32 v{t0}, 15, v1
          v_lshrrev_b32 v{t1}, 4, v1
          v_xor_b32 v{t2}, v{t0}, v{t1}
          v_lshlrev_b32 v{t2}, 4, v{t2}
          v_lshl_add_u32 v{t2}, v{t0}, 9, v{t2}
          v_add_u32 v{aX}, s{sT0}, v{t2}""")
    for i in range(1, 4): A(f"v_xor_b32 v{aX+i}, {64*i}, v{aX}")
    A(f"""v_bfe_u32 v{t2}, v1, 2, 2
          v_lshl_add_u32 v{t2}, v{t1}, 3, v{t2}
          v_lshlrev_b32 v{t2}, 6, v{t2}
          v_and_b32 v{t3}, 3, v1
          v_lshl_add_u32 v{t2}, v{t3}, 3, v{t2}
          v_and_b32 v{t3}, 1, v{t1}
          v_lshl_add_u32 v{t2}, v{t3}, 5, v{t2}
          s_add_u32 s{sT0}, s{sT0}, 8192
          v_add_u32 v{aW}, s{sT0}, v{t2}
          v_xor_b32 v{aW+1}, 32, v{aW}
          s_lshl_b32 s{sT0}, s{sW}, 11
          s_add_u32 s{sT0}, s{sT0}, {SCR_A}
          v_add_u32 v{aS}, s{sT0}, v{vL16}
          s_lshl_b32 s{sT0}, s{sW}, 7
          s_add_u32 s{sT1}, s{sT0}, {SCR_C}
          v_lshl_add_u32 v{aC}, v{t1}, 4, s{sT1}
          s_add_u32 s{sT1}, s{sT0}, {SCR_ST}
          v_lshl_add_u32 v{aT}, v{t0}, 3, s{sT1}""")
    for i in range(4): A(f"v_mov_b32 v{ones+i}, 0x3f803f80")
    A(f"v_mov_b32 v{st}, 0\nv_mov_b32 v{st+1}, 0")
    kvwait(32, 21)
    stamp("x16")
    tk = []
    for s in range(8):
        A(f"ds_read_b128 {vr(xf+4*s,4)}, v{aX+(s&3)} offset:{256*(s>>2)}"); tk.append(A.tl())
    for s in range(8):
        if s % 2 == 0: A.wait_lg(tk[s+1])
        for i in range(4):
            A(f"v_dot2c_f32_bf16 v{st}, v{ones}, v{xf+4*s+i}\nv_dot2c_f32_bf16 v{st+1}, v{xf+4*s+i}, v{xf+4*s+i}")
    for sw in ("16", "32"):
        A(f"""v_mov_b32 v{t0}, v{st}
              v_mov_b32 v{t1}, v{st+1}
              v_permlane{sw}_swap_b32 v{st}, v{t0}
              v_permlane{sw}_swap_b32 v{st+1}, v{t1}
              v_add_f32 v{st}, v{st}, v{t0}
              v_add_f32 v{st+1}, v{st+1}, v{t1}""")
    A(f"ds_write_b64 v{aT}, {vr(st,2)}")
    def wreads(s):
        for c in range(2):
            for t in range(2):
                A(f"ds_read_b64_tr_b16 {vr(wf+8*s+4*c+2*t,2)}, v{aW+c} offset:{2048*s+256*t}")
        return A.tl()
    def wmfma(s):
        for c in range(2):
            A(f"v_mfma_f32_16x16x32_bf16 {vr(acc+4*c,4)}, {vr(wf+8*s+4*c,4)}, {vr(xf+4*s,4)}, " + (vr(acc+4*c,4) if s else "0"))
            A(f"v_mfma_f32_16x16x32_bf16 {vr(cs+4*c,4)}, {vr(wf+8*s+4*c,4)}, {vr(ones,4)}, " + (vr(cs+4*c,4) if s else "0"))
    for half in range(2):
        kvwait(24 - 8*half, 13 - 8*half)
        tk = {}
        s0 = 4*half
        tk[s0] = wreads(s0); tk[s0+1] = wreads(s0+1)
        for s in range(s0, s0+4):
            if s + 2 < s0 + 4: tk[s+2] = wreads(s+2)
            A.wait_lg(tk[s]); wmfma(s)
    stamp("kvmm")
    A(f"""ds_write_b128 v{aS}, {vr(acc,4)}
          ds_write_b128 v{aS}, {vr(acc+4,4)} offset:1024
          s_mov_b32 exec_lo, 0x00010001
          s_mov_b32 exec_hi, 0x00010001
          ds_write_b128 v{aC}, {vr(cs,4)}
          ds_write_b128 v{aC}, {vr(cs+4,4)} offset:64
          s_mov_b64 exec, -1
          s_waitcnt lgkmcnt(0)
          s_barrier""")
    V.free(aX, aW, xf, wf, acc, cs, st, aS, aC, aT)
    A(f"s_cmp_eq_u32 s{sW}, 3\ns_cbranch_scc1 L_fin")
    A("\n".join(qdma(2) + qdma(3) + qdma(4) + qdma(5)))
    A("s_branch L_q\nL_fin:")
    A.c("wave 3: reduce the four K-slices, apply LayerNorm, publish K or V fragments")
    fa = V.alloc(32); fc = V.alloc(32); fs = V.alloc(8); pk = V.alloc(4, at=248); vFl = V.alloc(at=252); vGo = V.alloc(at=253)
    m_, rs_ = V.alloc(), V.alloc()
    A(f"""v_and_b32 v{t0}, 31, v1
          v_lshrrev_b32 v{t1}, 5, v1
          v_lshl_add_u32 v{t2}, v{t1}, 6, v{t0}
          v_lshlrev_b32 v{t2}, 4, v{t2}
          v_add_u32 v{t2}, {SCR_A}, v{t2}
          v_bfe_u32 v{t3}, v1, 4, 1
          v_lshl_add_u32 v{t3}, v{t1}, 2, v{t3}
          v_lshlrev_b32 v{t3}, 4, v{t3}
          v_add_u32 v{t3}, {SCR_C}, v{t3}
          v_and_b32 v{t0}, 15, v1
          v_lshlrev_b32 v{t0}, 3, v{t0}
          v_add_u32 v{t0}, {SCR_ST}, v{t0}""")
    for w in range(4): A(f"ds_read_b64 {vr(fs+2*w,2)}, v{t0} offset:{128*w}")
    tks = A.tl()
    for w in range(4):
        A(f"ds_read_b128 {vr(fc+8*w,4)}, v{t3} offset:{128*w}\nds_read_b128 {vr(fc+8*w+4,4)}, v{t3} offset:{128*w+32}")
    tkc = A.tl()
    A.wait_lg(tks)
    for w in range(4):
        A(f"ds_read_b128 {vr(fa+8*w,4)}, v{t2} offset:{2048*w}\nds_read_b128 {vr(fa+8*w+4,4)}, v{t2} offset:{2048*w+512}")
    A(f"buffer_load_dword v{vGo}, v{vGa}, {sr(DBG,4)}, 0 offen sc1")
    A(f"""v_pk_add_f32 {vr(fs,2)}, {vr(fs,2)}, {vr(fs+2,2)}
          v_pk_add_f32 {vr(fs+4,2)}, {vr(fs+4,2)}, {vr(fs+6,2)}
          v_pk_add_f32 {vr(fs,2)}, {vr(fs,2)}, {vr(fs+4,2)}""")
    ln_chain(fs, fs+1, m_, rs_, t0)
    def sum4(b):
        for i in range(0, 8, 2): A(f"v_pk_add_f32 {vr(b+i,2)}, {vr(b+i,2)}, {vr(b+8+i,2)}")
        for i in range(0, 8, 2): A(f"v_pk_add_f32 {vr(b+16+i,2)}, {vr(b+16+i,2)}, {vr(b+24+i,2)}")
        for i in range(0, 8, 2): A(f"v_pk_add_f32 {vr(b+i,2)}, {vr(b+i,2)}, {vr(b+16+i,2)}")
    A.wait_lg(tkc); sum4(fc)
    A.wait_lg(A.tl()); sum4(fa)
    for i in range(8): A(f"v_fma_f32 v{fa+i}, -v{m_}, v{fc+i}, v{fa+i}")
    for i in range(8): A(f"v_mul_f32 v{fa+i}, v{rs_}, v{fa+i}")
    for i in range(4): A(f"v_cvt_pk_bf16_f32 v{pk+i}, v{fa+2*i}, v{fa+2*i+1}")
    A(f"""s_lshl_b32 s{sT0}, s{sRB}, 13
          s_lshr_b32 s{sT1}, s{sHG}, 2
          s_lshl_b32 s{sT1}, s{sT1}, 12
          s_add_u32 s{sT0}, s{sT0}, s{sT1}
          s_bfe_u32 s{sT1}, s{sHG}, 0x10001
          v_and_b32 v{t0}, 15, v1
          v_bfe_u32 v{t2}, v1, 4, 1
          s_bitcmp1_b32 s{sHG}, 0
          s_cbranch_scc1 L_finv
          s_lshl_b32 s{sT1}, s{sT1}, 8
          v_lshl_add_u32 v{t0}, v{t2}, 5, v{t0}
          v_lshl_add_u32 v{t0}, v{t1}, 6, v{t0}
          v_lshlrev_b32 v{t0}, 4, v{t0}
          v_mov_b32 v{vFl}, v{m_}
          s_branch L_fins
          L_finv:
          v_lshlrev_b32 v{t0}, 6, v{t0}
          v_lshl_add_u32 v{t0}, v{t1}, 5, v{t0}
          v_lshl_add_u32 v{t0}, v{t2}, 3, v{t0}
          v_add_u32 v{t0}, {SCR_T}, v{t0}
          ds_write_b64 v{t0}, {vr(pk,2)}
          ds_write_b64 v{t0}, {vr(pk+2,2)} offset:16
          v_bfe_u32 v{t3}, v1, 2, 2
          v_lshl_add_u32 v{t3}, v{t1}, 3, v{t3}
          v_lshlrev_b32 v{t3}, 6, v{t3}
          v_lshl_add_u32 v{t3}, v{t2}, 5, v{t3}
          v_and_b32 v{t2}, 3, v1
          v_lshl_add_u32 v{t3}, v{t2}, 3, v{t3}
          v_add_u32 v{t3}, {SCR_T}, v{t3}
          s_lshl_b32 s{sT1}, s{sT1}, 10
          s_add_u32 s{sT1}, s{sT1}, 2048
          s_waitcnt lgkmcnt(0)
          ds_read_b64_tr_b16 {vr(pk,2)}, v{t3}
          ds_read_b64_tr_b16 {vr(pk+2,2)}, v{t3} offset:256
          v_mov_b32 v{t0}, v{vL16}
          v_mov_b32 v{vFl}, v{rs_}
          s_waitcnt lgkmcnt(0)
          L_fins:
          s_add_u32 s{sT0}, s{sT0}, s{sT1}
          buffer_store_dwordx4 {vr(pk,4)}, v{t0}, {sr(WS,4)}, s{sT0} offen sc1
          v_min_u32 v{vFl}, -2, v{vFl}
          v_writelane_b32 v{vFl}, s{sXCC}, 16
          L_q:""")
    V.free(fa, fc, fs, m_, rs_, ones)
    stamp("kvst")

    A.c("---- Q projection: wave = head, 64 rows x 32 columns, K streamed through the LDS ring ----")
    qa = V.alloc(32, at=24); aB = V.alloc(12, lo=56); aA = V.alloc(3, lo=56); fb = V.alloc(96, at=124); qc = V.alloc(4, at=220); sel = V.alloc(4, lo=56)
    A(f"""v_and_b32 v{t0}, 31, v1
          v_lshrrev_b32 v{t1}, 5, v1
          v_bfe_u32 v{t2}, v1, 1, 3
          v_xor_b32 v{t2}, v{t2}, v{t1}
          v_lshlrev_b32 v{t2}, 4, v{t2}
          v_lshl_add_u32 v{aB}, v{t0}, 7, v{t2}""")
    for s in range(1, 4): A(f"v_xor_b32 v{aB+s}, {32*s}, v{aB}")
    for g in range(1, 3):
        for s in range(4): A(f"v_add_u32 v{aB+4*g+s}, {2*SLOT*g}, v{aB+s}")
    A(f"""v_bfe_u32 v{t0}, v1, 2, 2
          v_lshl_add_u32 v{t2}, v{t1}, 3, v{t0}
          v_lshlrev_b32 v{t2}, 8, v{t2}
          v_xor_b32 v{t0}, s{sW}, v{t0}
          v_lshl_add_u32 v{t2}, v{t0}, 6, v{t2}
          v_bfe_u32 v{t0}, v1, 4, 1
          v_lshl_add_u32 v{t2}, v{t0}, 5, v{t2}
          v_and_b32 v{t3}, 3, v1
          v_lshl_add_u32 v{t2}, v{t3}, 3, v{t2}
          v_add_u32 v{aA}, 8192, v{t2}
          v_add_u32 v{aA+1}, {8192 + 2*SLOT}, v{t2}
          v_add_u32 v{aA+2}, {8192 + 4*SLOT}, v{t2}
          v_bfe_u32 v{t2}, v1, 2, 1
          v_cmp_eq_u32 vcc, v{t0}, v{t2}
          v_mov_b32 v{t3}, 0x3f803f80""")
    for i in range(4): A(f"v_cndmask_b32 v{sel+i}, 0, v{t3}, vcc")
    def qreads(c):
        slot = (4 + c) % 6; g = slot // 2; o = (slot & 1) * SLOT; b = fb + 48 * (c & 1)
        out = []
        for s in range(4):
            for t in range(2): out.append(f"ds_read_b64_tr_b16 {vr(b+12*s+2*t,2)}, v{aA+g} offset:{o+4096*s+1024*t}")
            for rt in range(2): out.append(f"ds_read_b128 {vr(b+12*s+4+4*rt,4)}, v{aB+4*g+s} offset:{o+4096*rt}")
        return out
    def qmfma(c):
        b = fb + 48 * (c & 1); out = []
        for s in range(4):
            z = c == 0 and s == 0
            for rt in range(2):
                out.append(f"v_mfma_f32_32x32x16_bf16 {vr(qa+16*rt,16)}, {vr(b+12*s,4)}, {vr(b+12*s+4+4*rt,4)}, " + ("0" if z else vr(qa+16*rt,16)))
            out.append(f"v_mfma_f32_16x16x32_bf16 {vr(qc,4)}, {vr(sel,4)}, {vr(b+12*s,4)}, " + ("0" if z else vr(qc,4)))
        return out
    FLAGC = opt.get("flag_chunk", 1)
    for c in range(17):
        if c < 16:
            hi = min(15, max(5, c + 4))
            A(f"s_waitcnt vmcnt({8*(hi-c)}) lgkmcnt(0)\ns_barrier")
        else:
            A("s_waitcnt lgkmcnt(0)")
        rd = qreads(c) if c < 16 else []
        mm = qmfma(c-1) if c > 0 else []
        dm = qdma(c+5) if 1 <= c <= 10 else []
        if not mm:
            A("\n".join(rd))
        else:
            for i, m in enumerate(mm):
                A(m)
                if i < 8 and rd: A("\n".join(rd[2*i:2*i+2]))
                if i == 9 and dm:
                    lab = A.label("L_nd")
                    A(f"s_cmp_eq_u32 s{sW}, 3\ns_cbranch_scc1 {lab}")
                    A("\n".join(dm)); A(f"{lab}:")
        if c == FLAGC:
            A.c("wave 3: K/V stores done and 'go' seen -> publish the flag line")
            lab = A.label("L_nf"); pl = A.label("L_go")
            A(f"s_cmp_eq_u32 s{sW}, 3\ns_cbranch_scc0 {lab}")
            A(f"s_waitcnt vmcnt(0)\nv_cmp_eq_u32 vcc, 0, v{vGo}\ns_cbranch_vccz {pl}_ok")
            spin_head(pl)
            A(f"buffer_load_dword v{vGo}, v{vGa}, {sr(DBG,4)}, 0 offen sc1\ns_waitcnt vmcnt(0)\nv_cmp_eq_u32 vcc, 0, v{vGo}")
            spin_tail(pl)
            A(f"""{pl}_ok:
                  s_lshl_b32 s{sT0}, s{sLID}, 7
                  s_add_u32 s{sT0}, s{sT0}, {WS_FL}
                  v_lshlrev_b32 v{vGa}, 2, v1
                  s_mov_b64 exec, 0x1ffff
                  buffer_store_dword v{vFl}, v{vGa}, {sr(WS,4)}, s{sT0} offen sc1
                  s_mov_b64 exec, -1""")
            stamp("flag")
            A(f"{lab}:")
        if c == 15:
            A.c("row statistics of this row block, group placement, all flags")
            sv = V.alloc(6, at=117); aFl = V.alloc(at=123); aSt = V.alloc(at=224); aXc = V.alloc(at=225)
            A(f"""v_bfe_u32 v{t0}, v1, 4, 1
                  v_and_b32 v{t1}, 15, v1
                  v_lshlrev_b32 v{t1}, 2, v{t1}
                  v_lshl_add_u32 v{aSt}, v{t0}, 8, v{t1}
                  v_and_b32 v{t0}, 7, v1
                  v_lshlrev_b32 v{aXc}, 7, v{t0}
                  v_lshlrev_b32 v{aFl}, 7, v0
                  s_lshl_b32 s90, s{sRB}, 10
                  s_add_u32 s90, s90, {WS_FL}
                  s_mov_b32 s91, {WS_FL}""")
            def stloads():
                for i in range(4): A(f"buffer_load_dword v{sv+i}, v{aSt}, {sr(WS,4)}, s90 offen offset:{512*(i>>1)+128*(i&1)} sc1")
                A(f"buffer_load_dword v{sv+4}, v{aXc}, {sr(WS,4)}, s90 offen offset:64 sc1")
            stloads()
            A(f"buffer_load_dword v{sv+5}, v{aFl}, {sr(WS,4)}, s91 offen offset:64 sc1")
    stamp("qmm")
    V.free(aB, aA, fb, sel, vD, pk, vFl, vGo, vGa, vDum)
    A.c("column sums split into three bf16 terms for the mean correction")
    ca = V.alloc(4, lo=124); cb_ = V.alloc(8, lo=124)
    A(f"""v_cvt_pk_bf16_f32 v{ca}, v{qc}, v{qc}
          v_and_b32 v{t0}, 0xffff0000, v{ca}
          v_sub_f32 v{t0}, v{qc}, v{t0}
          v_cvt_pk_bf16_f32 v{ca}, v{qc}, v{t0}
          v_and_b32 v{t1}, 0xffff0000, v{ca}
          v_sub_f32 v{t0}, v{t0}, v{t1}
          v_cvt_pk_bf16_f32 v{ca+1}, v{t0}, 0
          v_cmp_gt_u32 vcc, 32, v1
          v_mov_b32 v{ca+2}, 0
          v_mov_b32 v{ca+3}, 0
          v_cndmask_b32 v{ca}, 0, v{ca}, vcc
          v_cndmask_b32 v{ca+1}, 0, v{ca+1}, vcc""")
    for rt in range(2): A(f"v_mov_b32 v{cb_+4*rt+2}, 0\nv_mov_b32 v{cb_+4*rt+3}, 0")
    pl = A.label("L_st")
    A("s_waitcnt vmcnt(1)")
    any_sentinel(range(sv, sv+5), t0)
    A(f"s_cbranch_vccz {pl}_ok")
    spin_head(pl); stloads(); A("s_waitcnt vmcnt(0)"); any_sentinel(range(sv, sv+5), t0); spin_tail(pl)
    A(f"{pl}_ok:")
    A(f"""v_cmp_ne_u32 vcc, s{sXCC}, v{sv+4}
          s_cmp_eq_u64 vcc, 0
          s_cselect_b32 s{sFAST}, 1, 0""")
    if opt.get("force_slow"): A(f"s_mov_b32 s{sFAST}, 0")
    for rt in range(2):
        A(f"v_cvt_pk_bf16_f32 v{cb_+4*rt}, -v{sv+2*rt}, -v{sv+2*rt}\nv_mov_b32 v{cb_+4*rt+1}, v{cb_+4*rt}")
    for rt in range(2):
        A(f"v_mfma_f32_32x32x16_bf16 {vr(qa+16*rt,16)}, {vr(ca,4)}, {vr(cb_+4*rt,4)}, {vr(qa+16*rt,16)}")
    CS = math.log2(math.e) / math.sqrt(32.0)
    for rt in range(2): A(f"v_mul_f32 v{sv+2*rt+1}, {f32(CS)}, v{sv+2*rt+1}")

    ND = opt.get("kv_depth", 8)
    Q = V.alloc(16, at=8)
    vKV = V.alloc(4, at=100); vWo = V.alloc(4, at=104); vGu = V.alloc(4, at=108); vDn = V.alloc(4, at=112); aTr = V.alloc(at=116); IDX = V.alloc(at=7); SEL = V.alloc(4, at=96)
    sK = 64; sWo = 80; sGu, sDn, sXr, sM0, sM1 = 8, 10, 12, 13, 14
    for i in range(1, 16): A(f"s_mov_b32 s{sK+i}, {4096*i}")
    A(f"s_lshl_b32 s{sT0}, s{sHG}, 18")
    for i in range(16):
        if i in (10, 11): continue
        A(f"s_add_u32 s{sWo+i}, s{sT0}, {131072*i}\ns_and_b32 s{sWo+i}, s{sWo+i}, 0x1fffff")
    A(f"v_mov_b32 v{vKV}, v{vL16}")
    for i in range(1, 4): A(f"v_add_u32 v{vKV+i}, {65536*i}, v{vL16}")
    for rt in range(2):
        for i in range(16): A(f"v_mul_f32 v{qa+16*rt+i}, v{sv+2*rt+1}, v{qa+16*rt+i}")
        for i in range(8): A(f"v_cvt_pk_bf16_f32 v{Q+8*rt+i}, v{qa+16*rt+2*i}, v{qa+16*rt+2*i+1}")
    stamp("qdone")
    V.free(qa, qc, ca, cb_, aSt, aXc)
    SA = V.alloc(16, at=24); SB = V.alloc(16, at=40); O = V.alloc(32, at=56); L = V.alloc(8, at=88); KV = V.alloc(16 * ND, at=124)
    A(f"""s_lshl_b32 s{sT0}, s{sHG}, 8
          s_lshl_b32 s{sT1}, s{sW}, 6
          s_add_u32 s{sT0}, s{sT0}, s{sT1}
          v_lshrrev_b32 v{t0}, 2, v1
          v_and_b32 v{t1}, 3, v1
          v_lshlrev_b32 v{t2}, 4, v{t1}
          v_lshl_add_u32 v{t2}, v{t0}, 11, v{t2}
          v_add_u32 v{vWo}, s{sT0}, v{t2}""")
    for j in range(1, 4): A(f"v_add_u32 v{vWo+j}, {31744*j}, v{vWo}")
    A(f"""v_lshrrev_b32 v{t0}, 3, v1
          v_mul_u32_u24 v{t0}, 7168, v{t0}
          v_bfe_u32 v{t2}, v1, 4, 1
          v_lshlrev_b32 v{t2}, 1, v{t2}
          v_and_b32 v{t3}, 7, v1
          v_xor_b32 v{t2}, v{t2}, v{t3}
          v_lshl_add_u32 v{vGu}, v{t2}, 4, v{t0}
          v_xor_b32 v{t0}, 64, v{vGu}
          v_add_u32 v{vGu+1}, {8*7168-1024}, v{t0}
          v_add_u32 v{vGu+2}, {16*7168-2048}, v{vGu}
          v_add_u32 v{vGu+3}, {24*7168-3072}, v{t0}
          v_lshrrev_b32 v{t0}, 5, v1
          v_and_b32 v{t2}, 31, v1
          v_lshlrev_b32 v{t3}, 1, v{t0}
          v_xor_b32 v{t2}, v{t2}, v{t3}
          v_lshlrev_b32 v{t2}, 4, v{t2}
          v_lshl_add_u32 v{vDn}, v{t0}, 11, v{t2}
          v_xor_b32 v{t2}, 64, v{vDn}
          v_add_u32 v{vDn+1}, 3072, v{t2}
          v_add_u32 v{vDn+2}, 6144, v{vDn}
          v_add_u32 v{vDn+3}, 9216, v{t2}
          v_bfe_u32 v{t2}, v1, 2, 2
          v_lshl_add_u32 v{t2}, v{t0}, 2, v{t2}
          v_lshlrev_b32 v{t2}, 6, v{t2}
          v_bfe_u32 v{t3}, v1, 4, 1
          v_lshl_add_u32 v{t2}, v{t3}, 5, v{t2}
          v_and_b32 v{t3}, 1, v1
          v_lshl_add_u32 v{t2}, v{t3}, 4, v{t2}
          v_bfe_u32 v{t3}, v1, 1, 1
          v_lshl_add_u32 v{t2}, v{t3}, 3, v{t2}
          s_lshl_b32 s{sM0}, s{sW}, 14
          v_add_u32 v{aTr}, s{sM0}, v{t2}
          s_lshl_b32 s{sM1}, s{sW}, 13
          s_lshl_b32 s{sT0}, s{sKQ}, 2
          s_add_u32 s{sT0}, s{sT0}, s{sW}
          s_mul_i32 s{sT0}, s{sT0}, {64*7168}
          s_lshl_b32 s{sT1}, s{sCB}, 7
          s_add_u32 s{sGu}, s{sT0}, s{sT1}
          s_add_u32 s{sGu+1}, s{sGu}, {32*7168}
          s_lshl_b32 s{sT0}, s{sCB}, 2
          s_add_u32 s{sT0}, s{sT0}, s{sW}
          s_lshl_b32 s{sT0}, s{sT0}, 15
          s_lshl_b32 s{sT1}, s{sKQ}, 9
          s_add_u32 s{sDn}, s{sT0}, s{sT1}
          s_add_u32 s{sDn+1}, s{sDn}, 16384
          s_lshl_b32 s{sXr}, s{sRB}, 17
          v_mov_b32 v{IDX}, 0xdddddddd
          v_and_b32 v{t0}, 15, v1
          v_mov_b32 v{t3}, 0x3f803f80
          v_cmp_eq_u32 vcc, 0, v{t0}
          v_cndmask_b32 v{SEL}, 0, v{t3}, vcc
          v_cndmask_b32 v{SEL+1}, 0, v{t3}, vcc
          v_cmp_eq_u32 vcc, 4, v{t0}
          v_cndmask_b32 v{SEL+2}, 0, v{t3}, vcc
          v_cndmask_b32 v{SEL+3}, 0, v{t3}, vcc""")
    for i in range(0, 32, 2): A(f"v_mov_b64 {vr(O+i,2)}, 0")
    for i in range(0, 8, 2): A(f"v_mov_b64 {vr(L+i,2)}, 0")
    pl = A.label("L_fl")
    A(f"s_waitcnt vmcnt(0)\nv_cmp_eq_u32 vcc, -1, v{sv+5}\ns_cbranch_vccz {pl}_ok")
    spin_head(pl)
    A(f"buffer_load_dword v{sv+5}, v{aFl}, {sr(WS,4)}, s91 offen offset:64 sc1\ns_waitcnt vmcnt(0)\nv_cmp_eq_u32 vcc, -1, v{sv+5}")
    spin_tail(pl)
    A(f"{pl}_ok:\ns_barrier")
    stamp("kvrdy")
    V.free(sv, aFl)

    A.c("---- attention: wave = head, two 32-query tiles, all 2048 keys ----")
    A.c("S^T = K Q^T (log2 units, shift 0 as stand-in for the row max, checked below), P = exp2(S^T) in place;")
    A.c("the sparse MFMAs pick the high (bf16) half of each fp32 P register: O^T += V^T P, l += 1^T P")
    def kvreg(t, f): return KV + 16 * (t % ND) + 4 * f
    tick = {}
    def kvload(t, f):
        if t >= 64: return
        so = "0" if t % 16 == 0 else f"s{sK + t % 16}"
        A(f"buffer_load_dwordx4 {vr(kvreg(t,f),4)}, v{vKV + t//16}, {sr(WS,4)}, {so} offen offset:{1024*f}")
        tick[(t, f)] = A.tv()
    def qk(S, t, q, j, c0="0"):
        A(f"v_mfma_f32_32x32x16_bf16 {vr(S,16)}, {vr(kvreg(t,j),4)}, {vr(Q+8*q+4*j,4)}, " + (vr(S,16) if j else c0))
    def pv(q, t, j, S): A(f"v_smfmac_f32_32x32x32_bf16 {vr(O+16*q,16)}, {vr(kvreg(t,2+j),4)}, {vr(S+8*j,8)}, v{IDX}")
    def su(q, j, S): A(f"v_smfmac_f32_16x16x64_bf16 {vr(L+4*q,4)}, {vr(SEL,4)}, {vr(S+8*j,8)}, v{IDX}")
    def ex(S, a, b):
        for i in range(a, b): A(f"v_exp_f32 v{S+i}, v{S+i}")
    for t in range(ND):
        for f in range(4):
            if not (t == ND - 1 and f == 3): kvload(t, f)
    A(f"s_lshl_b32 s{sT0}, s{sHG}, 18")
    for i in (10, 11): A(f"s_add_u32 s{sWo+i}, s{sT0}, {131072*i}\ns_and_b32 s{sWo+i}, s{sWo+i}, 0x1fffff")
    groups = []
    moe = [("g", 0), ("u", 0), ("g", 1), ("u", 1), ("d", 0), ("d", 1)]
    for g in range(16):
        groups.append(("w", g))
        if g % 2 == 1 and moe: groups.append(moe.pop(0))
    groups.append(("x", 0))
    bg = []
    for kind, g in groups:
        for j in range(4): bg.append((kind, g, j))
    wtick = {}; tr_done_at = {}; tr_next = [0]; covered = [0]; lg_clean = [0]; bgi = [0]
    def bg_issue():
        if bgi[0] >= len(bg): return
        kind, g, j = bg[bgi[0]]
        if kind in "wx":
            n = 4 * g + j if kind == "w" else 64 + j
            if n >= 16 and not (n - 16 < lg_clean[0]): return
        if j == 0:
            if kind == "w": A(f"s_add_u32 m0, s{sM0}, {4096*(g&3)}")
            elif kind == "x": A(f"s_mov_b32 m0, s{sM0}")
            else: A(f"s_add_u32 m0, s{sM1}, {dict(g=L_G, u=L_U, d=L_D)[kind] + 4096*g}")
            if kind == "d" and g == 1:
                for i in range(4): A(f"v_xor_b32 v{vDn+i}, 128, v{vDn+i}")
        nt = opt.get("moe_nt", " nt")
        if kind == "w": A(f"buffer_load_dwordx4 v{vWo+j}, {sr(WO,4)}, s{sWo+g} offen offset:{1024*j} lds"); wtick[4*g+j] = A.tv()
        elif kind == "x": A(f"buffer_load_dwordx4 v{vWo+j}, {sr(X,4)}, s{sXr} offen offset:{1024*j} lds")
        elif kind == "d": A(f"buffer_load_dwordx4 v{vDn+j}, {sr(DN,4)}, s{sDn+g} offen offset:{1024*j}{nt} lds")
        else: A(f"buffer_load_dwordx4 v{vGu+j}, {sr(GA if kind == 'g' else UP,4)}, s{sGu+g} offen offset:{1024*j}{nt} lds")
        bgi[0] += 1
    def tr_issue():
        n = tr_next[0]
        if n >= 64 or n not in wtick or wtick[n] > covered[0]: return
        for t in range(2): A(f"ds_read_b64_tr_b16 {ar(4*n+2*t,2)}, v{aTr} offset:{1024*(n&15)+512*t}")
        tr_next[0] += 1
    def kvwait2(keys):
        tk = max(tick[k] for k in keys if k in tick)
        A(f"s_waitcnt vmcnt({min(62, A.vm - tk)}) lgkmcnt(0)")
        covered[0] = max(covered[0], tk); lg_clean[0] = tr_next[0]
    kvwait2([(0, 0), (0, 1)])
    qk(SA, 0, 0, 0); qk(SA, 0, 0, 1)
    kvwait2([(0, 2)])
    for t in range(64):
        ex(SA, 0, 2)
        if t: pv(1, t-1, 1, SB)
        kvload(t - 1 + ND, 3)
        ex(SA, 2, 5)
        if t: su(1, 1, SB)
        tr_issue()
        ex(SA, 5, 6)
        qk(SB, t, 1, 0); kvload(t + ND, 0)
        ex(SA, 6, 9)
        qk(SB, t, 1, 1); kvload(t + ND, 1)
        ex(SA, 9, 12)
        pv(0, t, 0, SA); bg_issue()
        ex(SA, 12, 15)
        su(0, 0, SA)
        ex(SA, 15, 16)
        kvwait2([(t, 3), (t+1, 0), (t+1, 1), (t+1, 2)])
        ex(SB, 0, 2)
        pv(0, t, 1, SA)
        if t % 3 != 2 or t > 40: bg_issue()
        ex(SB, 2, 5)
        su(0, 1, SA)
        ex(SB, 5, 6)
        if t < 63: qk(SA, t+1, 0, 0)
        ex(SB, 6, 9)
        if t < 63: qk(SA, t+1, 0, 1)
        tr_issue()
        ex(SB, 9, 12)
        pv(1, t, 0, SB); kvload(t + ND, 2)
        ex(SB, 12, 15)
        su(1, 0, SB)
        ex(SB, 15, 16)
    pv(1, 63, 1, SB); su(1, 1, SB)
    opt["bg_left"] = (len(bg) - bgi[0], 64 - tr_next[0])
    while bgi[0] < len(bg) or tr_next[0] < 64:
        A("s_waitcnt vmcnt(0) lgkmcnt(0)"); covered[0] = A.vm; lg_clean[0] = tr_next[0]
        for _ in range(16): bg_issue()
        for _ in range(16): tr_issue()
    stamp("attn")
    V.free(vWo, vGu, vDn, aTr)
    wr = V.alloc(8); aWr = V.alloc()
    A(f"""s_lshl_b32 s{sT0}, s{sHG}, 8
          s_lshl_b32 s{sT1}, s{sW}, 6
          s_add_u32 s{sT0}, s{sT0}, s{sT1}
          v_lshrrev_b32 v{aWr}, 5, v1
          v_lshlrev_b32 v{aWr}, 4, v{aWr}
          buffer_load_dwordx4 {vr(wr,4)}, v{aWr}, {sr(WR,4)}, s{sT0} offen
          buffer_load_dwordx4 {vr(wr+4,4)}, v{aWr}, {sr(WR,4)}, s{sT0} offen offset:32""")
    A.c("run-time check of the stand-in: row sums inside [2^-64, 2^64] mean no overflow and no harmful underflow")
    def lfix():
        A(f"""v_mov_b32 v{t0}, v{L}
              v_mov_b32 v{t1}, v{L+4}
              v_permlane32_swap_b32 v{L}, v{t0}
              v_permlane32_swap_b32 v{L+4}, v{t1}""")
    lfix()
    A(f"""v_min_f32 v{t0}, v{L}, v{L+4}
          v_add_f32 v{t1}, v{L}, v{L+4}
          v_cmp_nle_f32 vcc, {f32(2.0**-64)}, v{t0}
          s_mov_b64 s[{EX}:{EX+1}], vcc
          v_cmp_nge_f32 vcc, {f32(2.0**64)}, v{t1}
          s_or_b64 vcc, vcc, s[{EX}:{EX+1}]""")
    if opt.get("force_fallback"): A("s_mov_b64 vcc, -1")
    A("s_cbranch_vccnz L_exact\nL_norm:")
    V.free(SA); OF = V.alloc(16, at=24); aO = V.alloc()
    A(f"v_rcp_f32 v{t0}, v{L}\nv_rcp_f32 v{t1}, v{L+4}")
    A(f"""s_lshl_b32 s64, s{sLID}, 14
          s_add_u32 s64, s64, {WS_O}
          s_lshl_b32 s65, s{sW}, 12
          v_add_u32 v{aO}, s65, v{vL16}""")
    for q in range(2):
        for i in range(16): A(f"v_mul_f32 v{O+16*q+i}, v{t0 if q == 0 else t1}, v{O+16*q+i}")
        for i in range(8): A(f"v_cvt_pk_bf16_f32 v{OF+8*q+i}, v{O+16*q+2*i}, v{O+16*q+2*i+1}")
    def ost(sc):
        for j in range(2):
            for q in range(2): A(f"buffer_store_dwordx4 {vr(OF+8*q+4*j,4)}, v{aO}, {sr(WS,4)}, s64 offen offset:{2048*j+1024*q}{sc}")
    both_paths(ost)
    tko = A.tv()
    E = Asm(); E.nlab = 5000
    MX = KV + 32; M16 = KV + 48
    E(f"""L_exact:
          s_waitcnt vmcnt(0)
          v_mov_b32 v{MX}, 0xff800000
          v_mov_b32 v{MX+1}, 0xff800000
          s_mov_b32 s64, 0
          L_ex1:
          buffer_load_dwordx4 {vr(KV,4)}, v{vL16}, {sr(WS,4)}, s64 offen
          buffer_load_dwordx4 {vr(KV+4,4)}, v{vL16}, {sr(WS,4)}, s64 offen offset:1024
          s_waitcnt vmcnt(0)""")
    for q, S in ((0, SA), (1, SB)):
        E(f"v_mfma_f32_32x32x16_bf16 {vr(S,16)}, {vr(KV,4)}, {vr(Q+8*q,4)}, 0")
        E(f"v_mfma_f32_32x32x16_bf16 {vr(S,16)}, {vr(KV+4,4)}, {vr(Q+8*q+4,4)}, {vr(S,16)}")
    for q, S in ((0, SA), (1, SB)):
        for i in range(0, 16, 2): E(f"v_max3_f32 v{MX+q}, v{MX+q}, v{S+i}, v{S+i+1}")
    E(f"""s_add_u32 s64, s64, 4096
          s_cmp_lt_u32 s64, 0x40000
          s_cbranch_scc1 L_ex1""")
    for q in range(2):
        E(f"v_mov_b32 v{t0}, v{MX+q}\nv_permlane32_swap_b32 v{MX+q}, v{t0}\nv_max_f32 v{t0}, v{MX+q}, v{t0}")
        for i in range(16): E(f"v_sub_f32 v{M16+16*q+i}, 0, v{t0}")
    for i in range(0, 32, 2): E(f"v_mov_b64 {vr(O+i,2)}, 0")
    for i in range(0, 8, 2): E(f"v_mov_b64 {vr(L+i,2)}, 0")
    E("s_mov_b32 s64, 0\nL_ex2:")
    for f in range(4): E(f"buffer_load_dwordx4 {vr(KV+4*f,4)}, v{vL16}, {sr(WS,4)}, s64 offen offset:{1024*f}")
    E("s_waitcnt vmcnt(0)")
    for q, S in ((0, SA), (1, SB)):
        E(f"v_mfma_f32_32x32x16_bf16 {vr(S,16)}, {vr(KV,4)}, {vr(Q+8*q,4)}, {vr(M16+16*q,16)}")
        E(f"v_mfma_f32_32x32x16_bf16 {vr(S,16)}, {vr(KV+4,4)}, {vr(Q+8*q+4,4)}, {vr(S,16)}")
    for q, S in ((0, SA), (1, SB)):
        for i in range(16): E(f"v_exp_f32 v{S+i}, v{S+i}")
        for j in range(2):
            E(f"v_smfmac_f32_32x32x32_bf16 {vr(O+16*q,16)}, {vr(KV+8+4*j,4)}, {vr(S+8*j,8)}, v{IDX}")
            E(f"v_smfmac_f32_16x16x64_bf16 {vr(L+4*q,4)}, {vr(SEL,4)}, {vr(S+8*j,8)}, v{IDX}")
    E(f"""s_nop 7
          s_add_u32 s64, s64, 4096
          s_cmp_lt_u32 s64, 0x40000
          s_cbranch_scc1 L_ex2
          s_nop 15
          v_mov_b32 v{t0}, v{L}
          v_mov_b32 v{t1}, v{L+4}
          v_permlane32_swap_b32 v{L}, v{t0}
          v_permlane32_swap_b32 v{L+4}, v{t1}
          s_nop 1
          s_branch L_norm""")
    V.free(Q, KV, vKV, IDX, SEL, SB, O, L)

    A.c("---- output projection: wave = 32 output columns (wo^T fragments in AGPRs), accumulators start at x ----")
    oa = V.alloc(32); xr = V.alloc(16); bf = V.alloc(128); aFo = V.alloc(); vFo = V.alloc()
    A(f"""v_and_b32 v{t0}, 31, v1
          v_lshl_add_u32 v{t0}, v{t0}, 6, v{aWr}
          v_add_u32 v{t0}, s{sM0}, v{t0}""")
    A.wait_vm(tko - 6)
    for rt in range(2):
        for j in range(2): A(f"ds_read_b128 {vr(xr+8*rt+4*j,4)}, v{t0} offset:{2048*rt+32*j}")
    A(f"""s_lshl_b32 s66, s{sLID}, 7
          s_lshl_b32 s67, s{sW}, 2
          s_add_u32 s66, s66, s67
          s_add_u32 s66, s66, {WS_OF}
          s_lshl_b32 s67, s{sRB}, 10
          s_add_u32 s67, s67, {WS_OF}
          v_bfe_u32 v{t1}, v1, 2, 3
          v_and_b32 v{t2}, 3, v1
          v_lshlrev_b32 v{t2}, 2, v{t2}
          v_lshl_add_u32 v{aFo}, v{t1}, 7, v{t2}
          v_mov_b32 v{t3}, 0
          s_waitcnt lgkmcnt(0)
          s_barrier""")
    for j in range(2):
        for q in range(2): A(f"ds_write_b128 v{aO}, {vr(OF+8*q+4*j,4)} offset:{2048*j+1024*q}")
    A("s_waitcnt vmcnt(0)\ns_mov_b64 exec, 1")
    both_paths(lambda sc: A(f"buffer_store_dword v{t3}, v{t3}, {sr(WS,4)}, s66 offen{sc}"))
    A("s_mov_b64 exec, -1")
    stamp("oflag")
    A(f"buffer_load_dword v{vFo}, v{aFo}, {sr(WS,4)}, s67 offen sc1")
    for i in range(16):
        A(f"v_lshlrev_b32 v{oa+2*i}, 16, v{xr+i}\nv_and_b32 v{oa+2*i+1}, 0xffff0000, v{xr+i}")
    for p in range(1, 8):
        A(f"""s_add_u32 s{68+p}, s{sHG}, {p}
              s_and_b32 s{68+p}, s{68+p}, 7
              s_lshl_b32 s{68+p}, s{68+p}, 14
              s_add_u32 s{68+p}, s{68+p}, s{sXr}
              s_add_u32 s{68+p}, s{68+p}, {WS_O}""")
    pl = A.label("L_of")
    A(f"s_waitcnt vmcnt(0)\nv_cmp_eq_u32 vcc, -1, v{vFo}\ns_cbranch_vccz {pl}_ok")
    spin_head(pl)
    A(f"buffer_load_dword v{vFo}, v{aFo}, {sr(WS,4)}, s67 offen sc1\ns_waitcnt vmcnt(0)\nv_cmp_eq_u32 vcc, -1, v{vFo}")
    spin_tail(pl)
    A(f"{pl}_ok:")
    stamp("ordy")
    otk = {}
    def odma(p):
        A(f"s_add_u32 m0, s65, {16384*(p&3)}")
        for j in range(4): A(f"buffer_load_dwordx4 v{aO}, {sr(WS,4)}, s{68+p} offen offset:{1024*j} sc1 lds")
        otk[p] = A.tv()
    for p in (1, 2, 3): odma(p)
    def oreads(p):
        return [f"ds_read_b128 {vr(bf+64*(p&1)+4*i,4)}, v{vL16} offset:{16384*(p&3)+1024*i}" for i in range(16)]
    def omfma(p):
        return [f"v_mfma_f32_32x32x16_bf16 {vr(oa+16*(i&1),16)}, {ar(32*p+4*(i>>1),4)}, {vr(bf+64*(p&1)+4*i,4)}, {vr(oa+16*(i&1),16)}" for i in range(16)]
    for p in range(9):
        if p == 0: A("s_waitcnt lgkmcnt(0)\ns_barrier")
        elif p < 8: A(f"s_waitcnt vmcnt({A.vm - otk[p]}) lgkmcnt(0)\ns_barrier")
        else: A("s_waitcnt lgkmcnt(0)")
        rd = oreads(p) if p < 8 else []
        if p == 0:
            A("\n".join(rd)); continue
        for i, m in enumerate(omfma(p-1)):
            A(m)
            if i == 0 and p + 3 <= 7: odma(p + 3)
            if 1 <= i <= 8 and rd: A("\n".join(rd[2*i-2:2*i]))
    stamp("omm")
    V.free(xr, bf, aFo, vFo, OF, aO)

    A.c("---- h = x + attention; LayerNorm-2 partial statistics ----")
    hp = V.alloc(16); s4 = V.alloc(8); one = V.alloc(); aH = V.alloc()
    A(f"""v_mov_b32 v{one}, 0x3f803f80
          v_and_b32 v{t0}, 31, v1
          v_mul_u32_u24 v{t0}, {HTS}, v{t0}
          s_lshl_b32 s{sT0}, s{sW}, 6
          v_add3_u32 v{aH}, v{t0}, v{aWr}, s{sT0}
          s_lshl_b32 s{sT0}, s{sW}, 10
          s_add_u32 s{sT0}, s{sT0}, {SP}
          v_add_u32 v{t1}, s{sT0}, v{vL16}""")
    for i in range(8): A(f"v_mov_b32 v{s4+i}, 0")
    for i in range(16): A(f"v_cvt_pk_bf16_f32 v{hp+i}, v{oa+2*i}, v{oa+2*i+1}")
    for rt in range(2):
        for j in range(2): A(f"ds_write_b128 v{aH}, {vr(hp+8*rt+4*j,4)} offset:{HT + 32*HTS*rt + 32*j}")
    for i in range(8): A(f"v_dot2c_f32_bf16 v{s4+3}, v{one}, v{wr+i}")
    for rt in range(2):
        for i in range(8):
            A(f"""v_dot2c_f32_bf16 v{s4+4*rt}, v{one}, v{hp+8*rt+i}
                  v_dot2c_f32_bf16 v{s4+4*rt+1}, v{hp+8*rt+i}, v{hp+8*rt+i}
                  v_dot2c_f32_bf16 v{s4+4*rt+2}, v{wr+i}, v{hp+8*rt+i}""")
    A(f"v_mov_b32 v{s4+7}, v{s4+3}")
    for i in range(4): A(f"v_permlane32_swap_b32 v{s4+i}, v{s4+4+i}")
    for i in range(4): A(f"v_add_f32 v{s4+i}, v{s4+i}, v{s4+4+i}")
    A(f"ds_write_b128 v{t1}, {vr(s4,4)}\ns_waitcnt lgkmcnt(0)\ns_barrier")
    stamp("hstat")
    V.free(oa, hp, s4, one, aH, wr, aWr)
    gw = V.alloc(64); dw = V.alloc(32); aG = V.alloc(); aDn = V.alloc(4)
    def moe_addr():
        A(f"""v_lshrrev_b32 v{t0}, 4, v1
              v_bfe_u32 v{t1}, v1, 2, 2
              v_lshl_add_u32 v{t2}, v{t0}, 3, v{t1}
              v_and_b32 v{t0}, 1, v{t0}
              v_lshrrev_b32 v{t3}, 1, v{t1}
              v_lshl_or_b32 v{t3}, v{t0}, 1, v{t3}
              v_xor_b32 v{t3}, s{sW}, v{t3}
              v_lshlrev_b32 v{t3}, 5, v{t3}
              v_lshl_add_u32 v{aG}, v{t2}, 7, v{t3}
              v_and_b32 v{t3}, 3, v1
              v_lshl_add_u32 v{aG}, v{t3}, 3, v{aG}
              v_add_u32 v{aG}, {L_G}, v{aG}
              v_lshl_or_b32 v{t0}, v{t0}, 2, v{t1}
              s_lshl_b32 s{sT0}, s{sW}, 2
              v_xor_b32 v{t0}, s{sT0}, v{t0}
              v_lshlrev_b32 v{t0}, 5, v{t0}
              v_lshl_add_u32 v{t0}, v{t2}, 9, v{t0}
              v_lshl_add_u32 v{t0}, v{t3}, 3, v{t0}
              v_add_u32 v{aDn}, {L_D}, v{t0}""")
        for c in range(1, 4): A(f"v_xor_b32 v{aDn+c}, {32*c}, v{aDn}")
    def moe_reads():
        for m in range(2):
            for s in range(8):
                for t in range(2): A(f"ds_read_b64_tr_b16 {vr(gw+32*m+4*s+2*t,2)}, v{aG} offset:{32768*m+4096*s+512*t}")
        for c in range(4):
            for s in range(2):
                for t in range(2): A(f"ds_read_b64_tr_b16 {vr(dw+8*c+4*s+2*t,2)}, v{aDn+c} offset:{16384*s+2048*t}")
    A(f"s_cmp_eq_u32 s{sW}, 0\ns_cbranch_scc0 L_bulk")
    A.c("wave 0: exchange statistics inside the row-block group, pick the candidate row, publish it")
    pa = V.alloc(32); m2, rs2, r2 = V.alloc(), V.alloc(), V.alloc()
    hr, hn, orow = V.alloc(), V.alloc(), V.alloc(); vL4 = V.alloc()
    for w in range(4): A(f"ds_read_b128 {vr(pa+4*w,4)}, v{vL16} offset:{SP+1024*w}")
    A(f"""s_lshl_b32 s64, s{sLID}, 10
          s_add_u32 s64, s64, {WS_ST}
          s_lshl_b32 s65, s{sRB}, 13
          s_add_u32 s65, s65, {WS_ST}
          s_add_u32 s66, s65, 4096
          s_waitcnt lgkmcnt(0)""")
    for a, b in ((0, 4), (8, 12), (0, 8)):
        for i in (0, 2): A(f"v_pk_add_f32 {vr(pa+a+i,2)}, {vr(pa+a+i,2)}, {vr(pa+b+i,2)}")
    for i in range(4): A(f"v_min_u32 v{pa+i}, -2, v{pa+i}")
    both_paths(lambda sc: A(f"buffer_store_dwordx4 {vr(pa,4)}, v{vL16}, {sr(WS,4)}, s64 offen{sc}"))
    moe_addr()
    def sloads():
        for g in range(8): A(f"buffer_load_dwordx4 {vr(pa+4*g,4)}, v{vL16}, {sr(WS,4)}, s{65+(g>>2)} offen offset:{1024*(g&3)} sc1")
    sloads()
    moe_reads()
    pl = A.label("L_s2")
    A("s_waitcnt vmcnt(0)"); any_sentinel(range(pa, pa+32), t0)
    A(f"s_cbranch_vccz {pl}_ok")
    spin_head(pl); sloads(); A("s_waitcnt vmcnt(0)"); any_sentinel(range(pa, pa+32), t0); spin_tail(pl)
    A(f"{pl}_ok:")
    stamp("st2")
    for a, b in ((0, 4), (8, 12), (16, 20), (24, 28), (0, 8), (16, 24), (0, 16)):
        for i in (0, 2): A(f"v_pk_add_f32 {vr(pa+a+i,2)}, {vr(pa+a+i,2)}, {vr(pa+b+i,2)}")
    mr = V.alloc(2)
    ln_chain(pa, pa+1, mr, mr+1, t0)
    A(f"""v_fma_f32 v{r2}, -v{mr}, v{pa+3}, v{pa+2}
          v_lshlrev_b32 v{t1}, 3, v1
          v_mul_f32 v{r2}, v{mr+1}, v{r2}
          ds_write_b64 v{t1}, {vr(mr,2)} offset:{MR}""")
    def wave_max(dst, src):
        A(f"""v_max_f32_dpp v{dst}, v{src}, v{src} quad_perm:[1,0,3,2] row_mask:0xf bank_mask:0xf
              v_max_f32_dpp v{dst}, v{dst}, v{dst} quad_perm:[2,3,0,1] row_mask:0xf bank_mask:0xf
              v_max_f32_dpp v{dst}, v{dst}, v{dst} row_half_mirror row_mask:0xf bank_mask:0xf
              v_max_f32_dpp v{dst}, v{dst}, v{dst} row_mirror row_mask:0xf bank_mask:0xf
              v_mov_b32 v{t3}, v{dst}
              v_permlane16_swap_b32 v{dst}, v{t3}
              v_max_f32 v{dst}, v{dst}, v{t3}
              v_mov_b32 v{t3}, v{dst}
              v_permlane32_swap_b32 v{dst}, v{t3}
              v_max_f32 v{dst}, v{dst}, v{t3}""")
    wave_max(t0, r2)
    sB, sMm, sRs, sR = 70, 71, 72, 73
    A(f"""v_cmp_eq_f32 vcc, v{t0}, v{r2}
          v_lshlrev_b32 v{vL4}, 2, v1
          s_ff1_i32_b64 s{sB}, vcc
          s_max_i32 s{sB}, s{sB}, 0
          s_mul_i32 s{sT0}, s{sB}, {HTS}
          v_add_u32 v{t1}, s{sT0}, v{vL4}
          ds_read_b32 v{hr}, v{t1} offset:{HT}
          v_mov_b32 v{t2}, s{sB}
          v_mov_b32 v{t1}, 0
          ds_write_b32 v{t1}, v{t2} offset:{MR+512}
          v_readlane_b32 s{sMm}, v{mr}, s{sB}
          v_readlane_b32 s{sRs}, v{mr+1}, s{sB}
          v_readlane_b32 s{sR}, v{r2}, s{sB}
          s_lshl_b32 s64, s{sHG}, 12
          s_add_u32 s64, s64, {WS_SC}
          s_lshl_b32 s65, s{sRB}, 7
          s_add_u32 s65, s65, s64
          s_lshl_b32 s66, s{sRB}, 6
          s_add_u32 s66, s66, s{sB}
          s_min_u32 s{sR}, s{sR}, -2
          v_mov_b32 v{pa}, s{sR}
          v_mov_b32 v{pa+1}, s66
          s_mov_b64 exec, 1
          buffer_store_dwordx2 {vr(pa,2)}, v{t1}, {sr(WS,4)}, s65 offen sc1
          s_mov_b64 exec, -1
          s_lshl_b32 s67, s{sLID}, 9
          s_add_u32 s67, s67, {WS_HN}
          s_waitcnt lgkmcnt(0)
          s_barrier
          v_lshlrev_b32 v{t0}, 16, v{hr}
          v_and_b32 v{t1}, 0xffff0000, v{hr}
          v_subrev_f32 v{t2}, s{sMm}, v{t0}
          v_subrev_f32 v{t3}, s{sMm}, v{t1}
          v_cvt_pk_bf16_f32 v{t3}, v{t2}, v{t3}
          v_lshlrev_b32 v{t2}, 16, v{t3}
          v_and_b32 v{t3}, 0xffff0000, v{t3}
          v_mul_f32 v{t2}, s{sRs}, v{t2}
          v_mul_f32 v{t3}, s{sRs}, v{t3}
          v_cvt_pk_bf16_f32 v{hn}, v{t2}, v{t3}
          v_min_u32 v{hr}, -2, v{hr}
          v_min_u32 v{hn}, -2, v{hn}
          buffer_store_dword v{hn}, v{vL4}, {sr(WS,4)}, s67 offen sc1
          buffer_store_dword v{hr}, v{vL4}, {sr(WS,4)}, s67 offen offset:256 sc1
          v_lshlrev_b32 v{t2}, 16, v{hn}
          v_and_b32 v{t3}, 0xffff0000, v{hn}
          v_add_f32 v{t0}, v{t0}, v{t2}
          v_add_f32 v{t1}, v{t1}, v{t3}
          v_cvt_pk_bf16_f32 v{orow}, v{t0}, v{t1}
          v_and_b32 v{t2}, 31, v1
          v_lshlrev_b32 v{t2}, 7, v{t2}""")
    stamp("cand")
    A.c("global arg-max over the 32 candidates")
    pl = A.label("L_g1")
    spin_head(pl)
    A(f"buffer_load_dwordx2 {vr(pa,2)}, v{t2}, {sr(WS,4)}, s64 offen sc1\ns_waitcnt vmcnt(0)")
    any_sentinel([pa, pa+1], t0); spin_tail(pl)
    stamp("g1")
    wave_max(t0, pa)
    sG, sRow = 74, 75
    A(f"""v_cmp_eq_f32 vcc, v{t0}, v{pa}
          s_ff1_i32_b64 s{sG}, vcc
          s_max_i32 s{sG}, s{sG}, 0
          s_lshl_b32 s76, s{sG}, 12
          s_add_u32 s76, s76, {WS_HN}
          s_cmp_eq_u32 s{sRED}, 1
          s_cbranch_scc1 L_red""")
    A.c("x_sel slice for this workgroup's K quarter -> LDS")
    A(f"""s_lshl_b32 s{sT0}, s{sKQ}, 10
          s_add_u32 s76, s76, s{sT0}
          v_bfe_u32 v{t1}, v1, 4, 1
          v_and_b32 v{t2}, 15, v1
          v_lshlrev_b32 v{t2}, 4, v{t2}
          v_lshl_add_u32 v{t1}, v{t1}, 9, v{t2}""")
    pl = A.label("L_xs")
    spin_head(pl)
    A(f"buffer_load_dwordx4 {vr(pa+4,4)}, v{t1}, {sr(WS,4)}, s76 offen sc1\ns_waitcnt vmcnt(0)")
    any_sentinel(range(pa+4, pa+8), t0); spin_tail(pl)
    A(f"""v_and_b32 v{t1}, 511, v{vL16}
          ds_write_b128 v{t1}, {vr(pa+4,4)} offset:{XS}""")
    def own_row():
        lab = A.label("L_won")
        A(f"""s_cmp_eq_u32 s{sG}, s{sRB}
              s_cbranch_scc1 {lab}
              s_lshl_b32 s{sT0}, s66, 11
              s_lshl_b32 s{sT1}, s{sHG}, 8
              s_add_u32 s{sT0}, s{sT0}, s{sT1}
              buffer_store_dword v{orow}, v{vL4}, {sr(OUT,4)}, s{sT0} offen{opt.get('out_sc', ' sc1')}
              {lab}:""")
    own_row()
    stamp("xsel")
    A("s_branch L_moe")

    A.c("waves 1..3: out = h + LN(h) for every row but the candidate")
    A("L_bulk:")
    moe_addr(); moe_reads()
    A("s_waitcnt lgkmcnt(0)\ns_barrier")
    hv = V.alloc(24); mv = V.alloc(12); bb = V.alloc(); aHt = V.alloc(); aMr = V.alloc(); aOut = V.alloc(); row = V.alloc(); u = V.alloc(16)
    A(f"""s_sub_u32 s64, s{sW}, 1
          s_lshl_b32 s64, s64, 2
          v_lshrrev_b32 v{row}, 4, v1
          v_add_u32 v{row}, s64, v{row}
          v_and_b32 v{t0}, 15, v1
          v_lshlrev_b32 v{t0}, 4, v{t0}
          v_lshl_add_u32 v{aOut}, v{row}, 11, v{t0}
          v_mul_u32_u24 v{aHt}, {HTS}, v{row}
          v_add_u32 v{aHt}, v{aHt}, v{t0}
          v_lshlrev_b32 v{aMr}, 3, v{row}
          v_mov_b32 v{t1}, 0
          ds_read_b32 v{bb}, v{t1} offset:{MR+512}""")
    tks = []
    for i in range(6):
        A(f"ds_read_b128 {vr(hv+4*i,4)}, v{aHt} offset:{HT+12*HTS*i}\nds_read_b64 {vr(mv+2*i,2)}, v{aMr} offset:{MR+96*i}"); tks.append(A.tl())
    A(f"""s_lshl_b32 s65, s{sRB}, 17
          s_lshl_b32 s66, s{sHG}, 8
          s_add_u32 s65, s65, s66""")
    for i in range(6):
        if i == 5: A(f"s_cmp_eq_u32 s{sW}, 1\ns_cbranch_scc0 L_bulkd")
        A.wait_lg(tks[i])
        h = hv + 4 * i
        for k in range(4): A(f"v_lshlrev_b32 v{u+2*k}, 16, v{h+k}\nv_and_b32 v{u+2*k+1}, 0xffff0000, v{h+k}")
        for k in range(8): A(f"v_sub_f32 v{u+8+k}, v{u+k}, v{mv+2*i}")
        for k in range(4): A(f"v_cvt_pk_bf16_f32 v{h+k}, v{u+8+2*k}, v{u+8+2*k+1}")
        for k in range(4): A(f"v_lshlrev_b32 v{u+8+2*k}, 16, v{h+k}\nv_and_b32 v{u+8+2*k+1}, 0xffff0000, v{h+k}")
        for k in range(8): A(f"v_mul_f32 v{u+8+k}, v{u+8+k}, v{mv+2*i+1}")
        for k in range(4): A(f"v_cvt_pk_bf16_f32 v{h+k}, v{u+8+2*k}, v{u+8+2*k+1}")
        for k in range(4): A(f"v_lshlrev_b32 v{u+8+2*k}, 16, v{h+k}\nv_and_b32 v{u+8+2*k+1}, 0xffff0000, v{h+k}")
        for k in range(8): A(f"v_add_f32 v{u+k}, v{u+k}, v{u+8+k}")
        A(f"v_cmp_ne_u32 vcc, v{row}, v{bb}")
        for k in range(4): A(f"v_cvt_pk_bf16_f32 v{h+k}, v{u+2*k}, v{u+2*k+1}")
        A(f"""s_mov_b64 exec, vcc
              buffer_store_dwordx4 {vr(h,4)}, v{aOut}, {sr(OUT,4)}, s65 offen{opt.get('out_sc', ' sc1')}
              s_mov_b64 exec, -1
              v_add_u32 v{row}, 12, v{row}
              s_add_u32 s65, s65, {12*2048}""")
    A(f"""L_bulkd:
          s_cmp_eq_u32 s{sRED}, 1
          s_cbranch_scc1 L_fin2""")
    V.free(hv, mv, bb, aHt, aMr, aOut, row, u)

    A.c("---- routed FFN: gate/up partials for 64 columns x 256 k ----")
    xb = V.alloc(32); ga = V.alloc(8); aZ = V.alloc(4)
    A(f"""L_moe:
          v_lshrrev_b32 v{t0}, 4, v1
          v_lshlrev_b32 v{t0}, 4, v{t0}
          v_and_b32 v{t1}, 15, v1
          s_lshl_b32 s64, s{sLID}, 9
          s_lshl_b32 s65, s{sW}, 7
          s_add_u32 s64, s64, s65
          s_add_u32 s64, s64, {WS_GU}
          v_lshl_add_u32 v{t2}, v{t1}, 6, v{t0}
          v_mov_b32 v{t3}, 128""")
    for c in range(4): A(f"v_cmp_eq_u32 vcc, {c}, v{t1}\nv_cndmask_b32 v{aZ+c}, v{t3}, v{t0}, vcc")
    A("s_waitcnt lgkmcnt(0)\ns_barrier")
    tks = []
    for s in range(8): A(f"ds_read_b128 {vr(xb+4*s,4)}, v{t0} offset:{XS+64*s}"); tks.append(A.tl())
    for s in range(8):
        if s % 2 == 0: A.wait_lg(tks[s+1])
        for m in range(2): A(f"v_mfma_f32_16x16x32_bf16 {vr(ga+4*m,4)}, {vr(gw+32*m+4*s,4)}, {vr(xb+4*s,4)}, " + (vr(ga+4*m,4) if s else "0"))
    A(f"v_cmp_eq_u32 vcc, 1, v{t1}")
    for i in range(4): A(f"v_cndmask_b32 v{ga+i}, v{ga+i}, v{ga+4+i}, vcc")
    for i in range(4): A(f"v_min_u32 v{ga+i}, -2, v{ga+i}")
    A("s_mov_b32 exec_lo, 0x00030003\ns_mov_b32 exec_hi, 0x00030003")
    both_paths(lambda sc: A(f"buffer_store_dwordx4 {vr(ga,4)}, v{t2}, {sr(WS,4)}, s64 offen{sc}"))
    A("s_mov_b64 exec, -1")
    stamp("gu")
    A(f"s_cmp_eq_u32 s{sW}, 0\ns_cbranch_scc0 L_act")
    A.c("wave 0: sum the four K quarters, SwiGLU -> LDS")
    A(f"""s_and_b32 s65, s{sLID}, 0xfc
          s_lshl_b32 s65, s65, 9
          s_add_u32 s65, s65, {WS_GU}
          v_lshlrev_b32 v{t1}, 2, v{t1}
          v_lshl_add_u32 v{t1}, v{t0}, 3, v{t1}""")
    pl = A.label("L_gu")
    spin_head(pl)
    for k in range(4):
        for m in range(2): A(f"buffer_load_dword v{pa+2*k+m}, v{t1}, {sr(WS,4)}, s65 offen offset:{512*k+64*m} sc1")
    A("s_waitcnt vmcnt(0)"); any_sentinel(range(pa, pa+8), t2); spin_tail(pl)
    stamp("gu2")
    A(f"""v_pk_add_f32 {vr(pa,2)}, {vr(pa,2)}, {vr(pa+2,2)}
          v_pk_add_f32 {vr(pa+4,2)}, {vr(pa+4,2)}, {vr(pa+6,2)}
          v_pk_add_f32 {vr(pa,2)}, {vr(pa,2)}, {vr(pa+4,2)}
          v_cvt_pk_bf16_f32 v{pa+1}, v{pa}, v{pa+1}
          v_lshlrev_b32 v{pa}, 16, v{pa+1}
          v_and_b32 v{pa+1}, 0xffff0000, v{pa+1}
          v_mul_f32 v{t2}, {f32(-math.log2(math.e))}, v{pa}
          v_exp_f32 v{t2}, v{t2}
          v_lshlrev_b32 v{t1}, 1, v1
          v_add_f32 v{t2}, 1.0, v{t2}
          v_rcp_f32 v{t2}, v{t2}
          v_mov_b32 v{t3}, 0
          v_mul_f32 v{pa}, v{pa}, v{t2}""")
    rbf(pa, pa)
    A(f"""v_mul_f32 v{pa}, v{pa}, v{pa+1}
          v_cvt_pk_bf16_f32 v{pa}, v{pa}, v{pa}
          ds_write_b16 v{t1}, v{t3} offset:{ACT+128}
          ds_write_b16 v{t1}, v{pa} offset:{ACT}
          L_act:
          s_lshl_b32 s64, s{sKQ}, 2
          s_add_u32 s64, s64, s{sW}
          s_lshl_b32 s64, s64, 14
          s_lshl_b32 s65, s{sCB}, 7
          s_add_u32 s64, s64, s65
          s_add_u32 s64, s64, {WS_Y}
          v_and_b32 v{t1}, 1, v1
          v_lshl_add_u32 v{t1}, v{t1}, 6, v{t0}
          v_bfe_u32 v{t2}, v1, 1, 1
          v_lshl_add_u32 v{t1}, v{t2}, 13, v{t1}
          s_waitcnt lgkmcnt(0)
          s_barrier""")
    tks = []
    for c in range(4):
        for s in range(2): A(f"ds_read_b128 {vr(xb+8*c+4*s,4)}, v{aZ+c} offset:{ACT+64*s}")
        tks.append(A.tl())
    for c in range(4):
        A.wait_lg(tks[c])
        for s in range(2): A(f"v_mfma_f32_16x16x32_bf16 {vr(ga,4)}, {vr(dw+8*c+4*s,4)}, {vr(xb+8*c+4*s,4)}, " + (vr(ga,4) if c or s else "0"))
    for i in range(4): A(f"v_min_u32 v{ga+i}, -2, v{ga+i}")
    A(f"""s_mov_b32 exec_lo, 0x000f000f
          s_mov_b32 exec_hi, 0x000f000f
          buffer_store_dwordx4 {vr(ga,4)}, v{t1}, {sr(WS,4)}, s64 offen sc1
          s_mov_b64 exec, -1""")
    stamp("y")
    A("s_branch L_fin2")

    A.c("reducer workgroups (wave 0): sum 56 partials for 32 columns, finish the routed row")
    A("L_red:")
    own_row()
    hh = V.alloc(4)
    A(f"""v_readlane_b32 s{sR}, v{pa}, s{sG}
          v_readlane_b32 s{sRow}, v{pa+1}, s{sG}
          s_lshr_b32 s{sT0}, s{sCB}, 2
          s_lshl_b32 s{sT0}, s{sT0}, 9
          s_add_u32 s76, s76, s{sT0}
          s_and_b32 s{sT0}, s{sCB}, 3
          s_lshl_b32 s{sT0}, s{sT0}, 6
          s_add_u32 s76, s76, s{sT0}
          v_and_b32 v{t1}, 7, v1
          v_lshlrev_b32 v{t1}, 3, v{t1}""")
    pl = A.label("L_rh")
    spin_head(pl)
    A(f"""buffer_load_dwordx2 {vr(hh,2)}, v{t1}, {sr(WS,4)}, s76 offen sc1
          buffer_load_dwordx2 {vr(hh+2,2)}, v{t1}, {sr(WS,4)}, s76 offen offset:256 sc1
          s_waitcnt vmcnt(0)""")
    any_sentinel(range(hh, hh+4), t0); spin_tail(pl)
    A(f"v_mov_b32 v{r2}, s{sR}")
    rbf(r2, r2)
    A(f"""v_mul_f32 v{r2}, {f32(-math.log2(math.e))}, v{r2}
          v_exp_f32 v{r2}, v{r2}
          s_lshl_b32 s64, s{sCB}, 13
          s_add_u32 s64, s64, {WS_Y}
          v_add_f32 v{r2}, 1.0, v{r2}
          v_rcp_f32 v{r2}, v{r2}
          s_add_u32 s65, s64, 4096
          s_and_b32 s{sRow}, s{sRow}, 2047
          s_lshl_b32 s{sRow}, s{sRow}, 11
          s_lshl_b32 s{sT0}, s{sCB}, 6
          s_add_u32 s{sRow}, s{sRow}, s{sT0}""")
    rbf(r2, r2)
    pl = A.label("L_ry")
    spin_head(pl)
    for k in range(7): A(f"buffer_load_dwordx4 {vr(pa+4*k,4)}, v{vL16}, {sr(WS,4)}, s{64+(k>>2)} offen offset:{1024*(k&3)} sc1")
    A("s_waitcnt vmcnt(0)"); any_sentinel(range(pa, pa+28), t0); spin_tail(pl)
    stamp("yrdy")
    for a, b in ((0, 4), (8, 12), (16, 20), (0, 8), (16, 24), (0, 16)):
        for i in (0, 2): A(f"v_pk_add_f32 {vr(pa+a+i,2)}, {vr(pa+a+i,2)}, {vr(pa+b+i,2)}")
    for i in range(4): A(f"v_add_f32_dpp v{pa+i}, v{pa+i}, v{pa+i} row_ror:8 row_mask:0xf bank_mask:0xf")
    for sw in ("16", "32"):
        for i in range(4): A(f"v_mov_b32 v{pa+4+i}, v{pa+i}")
        for i in range(4): A(f"v_permlane{sw}_swap_b32 v{pa+i}, v{pa+4+i}")
        for i in range(4): A(f"v_add_f32 v{pa+i}, v{pa+i}, v{pa+4+i}")
    def round4():
        for k in range(2): A(f"v_cvt_pk_bf16_f32 v{pa+4+k}, v{pa+2*k}, v{pa+2*k+1}")
        for k in range(2): A(f"v_lshlrev_b32 v{pa+2*k}, 16, v{pa+4+k}\nv_and_b32 v{pa+2*k+1}, 0xffff0000, v{pa+4+k}")
    round4()
    for i in range(4): A(f"v_mul_f32 v{pa+i}, v{pa+i}, v{r2}")
    round4()
    for src in (hh, hh+2):
        for k in range(2): A(f"v_lshlrev_b32 v{pa+8+2*k}, 16, v{src+k}\nv_and_b32 v{pa+8+2*k+1}, 0xffff0000, v{src+k}")
        for i in range(4): A(f"v_add_f32 v{pa+i}, v{pa+i}, v{pa+8+i}")
        if src == hh: round4()
    for k in range(2): A(f"v_cvt_pk_bf16_f32 v{pa+4+k}, v{pa+2*k}, v{pa+2*k+1}")
    A(f"""s_mov_b64 exec, 0xff
          buffer_store_dwordx2 {vr(pa+4,2)}, v{t1}, {sr(OUT,4)}, s{sRow} offen{opt.get('out_sc', ' sc1')}
          s_mov_b64 exec, -1""")
    A("L_fin2:")
    if stamps:
        A("s_waitcnt vmcnt(0)")
        stamp("end")
        A(f"""s_lshl_b32 s64, s2, 2
              s_add_u32 s64, s64, s{sW}
              s_lshl_b32 s64, s64, 8
              s_add_u32 s64, s64, {WS_TS}
              v_lshlrev_b32 v{t0}, 2, v1
              buffer_store_dword v255, v{t0}, {sr(WS,4)}, s64 offen""")
    A("s_endpgm")
    A.lines += E.lines
    A("L_end:\ns_endpgm")
    lines, added = fix_hazards(A.lines, opt.get("verbose", False))
    opt["nops_added"] = added; opt["vgpr_high"] = V.high
    head = open(f"cdna_kernels/{NAME}.s.ref").read().split("; Override launch")[0] if opt.get("head", True) else ""
    return head + f"""; @launch grid=(256,1,1) block=(256,1,1) lds=163840
.amdgcn_target "amdgcn-amd-amdhsa--gfx950"
.text
.globl {NAME}_kernel
.p2align 8
.type {NAME}_kernel,@function
{NAME}_kernel:
""" + "\n".join(lines) + f"""
.section .rodata,"a"
.p2align 6
.amdhsa_kernel {NAME}_kernel
  .amdhsa_next_free_vgpr 512
  .amdhsa_next_free_sgpr 102
  .amdhsa_accum_offset 256
  .amdhsa_group_segment_fixed_size 0
  .amdhsa_kernarg_size 104
  .amdhsa_user_sgpr_count 2
  .amdhsa_user_sgpr_kernarg_segment_ptr 1
  .amdhsa_system_sgpr_workgroup_id_x 1
.end_amdhsa_kernel
"""

if __name__ == "__main__":
    opt = {}
    out = f"cdna_kernels/{NAME}.s"
    for a in sys.argv[1:]:
        k, _, v = a.partition("=")
        if k == "out": out = v
        else: opt[k] = eval(v) if v else True
    s = build(opt)
    open(out, "w").write(s)
    print({k: v for k, v in opt.items()}, len(s))
```

```python
import re

class Regs:
    def __init__(self, n, start=0):
        self.n = n
        self.used = [False] * n
        for i in range(start): self.used[i] = True
        self.sizes = {}
        self.high = start
    def alloc(self, k=1, align=None, at=None, lo=0):
        if align is None: align = 1 if k == 1 else (2 if k < 4 else 4)
        rng = [at] if at is not None else range((lo + align - 1) // align * align, self.n - k + 1, align)
        for b in rng:
            if not any(self.used[b:b + k]):
                for i in range(b, b + k): self.used[i] = True
                self.sizes[b] = k
                self.high = max(self.high, b + k)
                return b
        raise RuntimeError(f"out of registers for {k}")
    def free(self, *bs):
        for b in bs:
            k = self.sizes.pop(b)
            for i in range(b, b + k): self.used[i] = False
    def nfree(self): return self.used.count(False)

def vr(b, n=1): return f"v{b}" if n == 1 else f"v[{b}:{b+n-1}]"
def ar(b, n=1): return f"a{b}" if n == 1 else f"a[{b}:{b+n-1}]"
def sr(b, n=1): return f"s{b}" if n == 1 else f"s[{b}:{b+n-1}]"

_reg_re = re.compile(r"^(-?)(abs\()?([vas])(?:(\d+)|\[(\d+):(\d+)\])\)?$")
def parse_reg(tok):
    tok = tok.strip()
    if tok in ("vcc", "vcc_lo", "vcc_hi"): return {("s", "vcc")}
    if tok in ("exec", "exec_lo", "exec_hi"): return {("s", "exec")}
    if tok == "m0": return {("s", "m0")}
    m = _reg_re.match(tok)
    if not m: return set()
    k = m.group(3)
    if m.group(4) is not None: return {(k, int(m.group(4)))}
    return {(k, i) for i in range(int(m.group(5)), int(m.group(6)) + 1)}

TRANS = ("v_exp_f32", "v_log_f32", "v_rcp_f32", "v_rsq_f32", "v_sqrt_f32", "v_sin_f32", "v_cos_f32")
class Ins:
    def __init__(self, text):
        self.text = text
        t = text.split(";")[0].strip()
        self.op = t.split()[0] if t else ""
        rest = t[len(self.op):].strip()
        ops = [o.strip() for o in re.split(r",(?![^\[]*\])", rest)] if rest else []
        self.mods = ""
        if ops:
            parts = ops[-1].split()
            if len(parts) > 1:
                ops[-1] = parts[0]; self.mods = " ".join(parts[1:])
        self.ops = ops
        op = self.op
        self.is_label = op.endswith(":")
        self.is_dir = op.startswith(".")
        self.is_mfma = op.startswith("v_mfma") or op.startswith("v_smfmac")
        self.is_valu = op.startswith("v_") and not self.is_mfma
        self.is_dot = op.startswith("v_dot")
        self.is_trans = op.replace("_e32", "").replace("_e64", "") in TRANS
        self.is_vmem = op.startswith(("buffer_", "global_"))
        self.is_ds = op.startswith("ds_")
        self.is_salu = op.startswith("s_")
        self.is_dpp = any(k in self.mods for k in ("row_", "quad_perm", "wave_"))
        self.is_perml = op.startswith("v_permlane")
        self.is_rdlane = op.startswith(("v_readlane", "v_readfirstlane", "v_writelane"))
        R = [parse_reg(o) for o in ops]
        self.w = set(); self.r = set(); self.srcC = set(); self.srcAB = set(); self.passes = 0
        self.stdata = set()
        if self.is_mfma:
            self.w = R[0]
            self.srcAB = R[1] | R[2]
            if op.startswith("v_smfmac"):
                self.srcC = R[0]; self.srcAB |= R[3]
            else: self.srcC = R[3]
            self.r = self.srcAB | self.srcC
            self.passes = 8 if "32x32" in op else 4
        elif self.is_valu:
            if self.is_perml:
                self.w = R[0] | R[1]; self.r = R[0] | R[1]
            elif op.startswith("v_cmp"):
                self.w = R[0]; self.r = set().union(*R[1:])
                if op.startswith("v_cmpx"): self.w |= {("s", "exec")}
            elif op.startswith(("v_add_co", "v_sub_co", "v_addc_co", "v_subb_co")):
                self.w = R[0] | R[1]; self.r = set().union(*R[2:])
            elif op == "v_nop": pass
            else:
                self.w = R[0]; self.r = set().union(*R[1:]) if len(R) > 1 else set()
                if op.startswith(("v_fmac", "v_dot2c", "v_writelane")) or self.is_dpp or "UNUSED_PRESERVE" in self.mods: self.r |= R[0]
        elif self.is_vmem:
            if "_load" in op:
                if " lds" in (" " + self.mods) or "_lds_" in op:
                    self.r = set().union(*R) | {("s", "m0")}
                else:
                    self.w = R[0]; self.r = set().union(*R[1:])
            elif op in ("buffer_inv", "buffer_wbl2"): pass
            else:
                self.r = set().union(*R)
                d = R[0] if op.startswith("buffer_") else R[1]
                if "x3" in op or "x4" in op: self.stdata = d
        elif self.is_ds:
            if op.startswith("ds_read") or op.startswith("ds_bperm") or op.startswith("ds_swz") or op.startswith("ds_swizzle"):
                self.w = R[0]; self.r = set().union(*R[1:])
            else: self.r = set().union(*R)
        elif self.is_salu:
            if op.startswith(("s_cmp", "s_cbranch", "s_branch", "s_waitcnt", "s_nop", "s_barrier", "s_endpgm", "s_setprio", "s_bitcmp", "s_setpc")):
                self.r = set().union(*R) if R else set()
            elif R:
                self.w = R[0]; self.r = set().union(*R[1:]) if len(R) > 1 else set()
                if "saveexec" in op: self.w |= {("s", "exec")}
    def occ(self):
        if self.is_trans: return 2
        if self.op.startswith("v_smfmac"): return 3
        if self.is_mfma: return 2
        return self.states()
    def states(self):
        if self.is_label or self.is_dir or not self.op: return 0
        if self.op == "s_nop": return int(self.ops[0], 0) + 1
        return 1

def vregs(s): return {x for x in s if x[0] in "va"}
def sregs(s): return {x for x in s if x[0] == "s"}

def need(p, c):
    n = 0
    if p.is_mfma:
        big = {4: (6, 8, 3), 8: (10, 12, 7)}[p.passes]
        if c.is_mfma:
            if p.w & c.srcAB: n = max(n, big[1])
            if p.w & c.srcC:
                if not (p.w == c.srcC and p.passes == c.passes): n = max(n, big[0])
            elif p.w & c.w: n = max(n, big[0]) if p.w != c.w or p.passes != c.passes else n
        else:
            if p.w & (c.r | c.w): n = max(n, big[1])
            if c.is_valu and (p.srcC & c.w): n = max(n, big[2])
    if p.is_valu:
        pv = vregs(p.w); ps = sregs(p.w)
        if c.is_mfma and (pv & c.r): n = max(n, 3 if p.is_dot else 2)
        if c.is_mfma and ("s", "exec") in ps: n = max(n, 4)
        if p.is_dot and (pv & (c.r | c.w)) and not (c.is_dot and c.op == p.op and not (pv & (vregs(c.r) - c.w))): n = max(n, 3)
        if c.is_valu:
            if c.is_dpp and (pv & c.r): n = max(n, 2)
            if c.is_dpp and ("s", "exec") in ps: n = max(n, 5)
            if c.is_perml and (pv & c.r): n = max(n, 2)
            if c.is_rdlane and (pv & c.r): n = max(n, 1)
            if c.is_rdlane and (ps & c.r): n = max(n, 4)
            if ps & c.r: n = max(n, 2)
            if p.is_trans and (pv & c.r) and not c.is_trans: n = max(n, 1)
            if ("sdwa" in p.op or "op_sel" in p.mods) and (pv & (c.r | c.w)): n = max(n, 1)
        if p.is_trans and (pv & c.r) and (c.is_vmem or c.is_ds): n = max(n, 1)
        if c.is_vmem and (ps & c.r): n = max(n, 5)
        if c.is_salu and (ps & c.r): n = max(n, 1)
        if c.op.startswith("s_cbranch_vcc") and ("s", "vcc") in ps: n = max(n, 1)
    if p.is_vmem and p.stdata and (p.stdata & c.w): n = max(n, 2)
    if p.is_salu and ("s", "m0") in p.w and c.is_vmem and ("s", "m0") in c.r: n = max(n, 1)
    return n

def fix_hazards(lines, verbose=False):
    out = []; hists = [[]]; snaps = {}; added = 0
    for ln in lines:
        ins = Ins(ln)
        if ins.is_label:
            hists += snaps.pop(ins.op[:-1], [])
            if not hists: hists = [[]]
        elif ins.op and not ins.is_dir:
            short = 0
            for hist in hists:
                dist = 0; docc = 0
                for p in reversed(hist):
                    nd = need(p, ins)
                    d = docc - 2 if (p.is_mfma and docc - 2 > dist) else dist
                    if nd > d: short = max(short, nd - d)
                    dist += p.states(); docc += p.occ()
                    if dist >= 20: break
            if short:
                nop = Ins(f"s_nop {short-1}")
                out.append(f"    s_nop {short-1}"); added += 1
                for h in hists: h.append(nop)
                if verbose: print(f"hazard: +{short} before: {ln.strip()}")
            for h in hists: h.append(ins)
            uniq = {}
            for h in hists:
                h = h[-22:]
                uniq[tuple(id(x) for x in h)] = h
            hists = list(uniq.values())
            if ins.op.startswith(("s_cbranch", "s_branch")):
                snaps.setdefault(ins.ops[0], []).extend([list(h) for h in hists])
            if ins.op in ("s_branch", "s_endpgm"): hists = []
        out.append(ln)
    return out, added

class Asm:
    def __init__(self):
        self.lines = []
        self.vm = 0; self.lg = 0
        self.nlab = 0
    def __call__(self, s):
        for l in s.strip("\n").split("\n"):
            l = l.strip()
            if not l: continue
            self.lines.append(l if l.endswith(":") else "    " + l)
            op = l.split()[0]
            if op.startswith(("buffer_", "global_")): self.vm += 1
            if op.startswith("ds_"): self.lg += 1
    def c(self, s): self.lines.append("    ; " + s)
    def label(self, base="L"):
        self.nlab += 1
        return f"{base}_{self.nlab}"
    def tv(self): return self.vm
    def tl(self): return self.lg
    def wait_vm(self, t):
        n = self.vm - t
        assert 0 <= n
        self(f"s_waitcnt vmcnt({min(n, 62)})")
    def wait_lg(self, t):
        n = self.lg - t
        assert 0 <= n
        self(f"s_waitcnt lgkmcnt({min(n, 14)})")
```

```python
import sys, math, struct, re
from asmlib import *

NAME = "sequential_preLN__grouped_kv_mqa__moe_arch_mod__prompt"

def f32(x): return "0x%08x" % struct.unpack("<I", struct.pack("<f", x))[0]

WS_KV = 0x000000
WS_FL = 0x040000
WS_F2 = WS_FL + 0x4000
WS_CLR = 0x080000
WS_ST = WS_CLR + 0x00000
WS_Y = WS_CLR + 0x40000
WS_GU = WS_CLR + 0x80000
WS_HN = WS_CLR + 0xA0000
WS_SC = WS_CLR + 0xC0000
WS_OF = WS_CLR + 0xC8000
WS_O = 0x200000
WS_WF = WS_CLR + 0xD0000
WS_WT = 0x600000
WS_TS = 0x800000
WS_SIZE = 0x900000

SLOT = 24576
SCR = 6 * SLOT
SCR_A, SCR_C, SCR_ST, SCR_T = SCR, SCR + 8192, SCR + 8192 + 512, SCR + 8192 + 1024
L_G, L_U, L_D = 0, 32768, 65536
RING = 98304
HT, HTS = 0, 272
SP = 17408
MR = SP + 4096
XS = MR + 1024
ACT = XS + 512
SPIN = 400000

sW = 3
X, WQ, WKV, WO, WR, GA, UP, DN, OUT, DBG, WS, DM = 4, 8, 12, 16, 20, 24, 28, 32, 36, 40, 44, 48
sRB, sHG, sLID, sXG, sCB, sRED, sKQ, sFAST = 52, 53, 54, 55, 56, 57, 58, 59
sXCC, sCNT, sT0, sT1 = 60, 61, 62, 63
EX = 96

def build(opt):
    A = Asm()
    V = Regs(256, 2)
    cold = Asm()
    stamps = opt.get("stamps", False)
    nst = [0]
    probe = opt.get("probe")
    def stamp(name):
        if name in opt.get("nost", ()): return
        if probe and name == "karg": A("s_memrealtime s[98:99]\ns_waitcnt lgkmcnt(0)\ns_mov_b32 s100, s98\ns_mov_b32 s101, s98")
        if probe == name:
            A("s_memrealtime s[98:99]\ns_waitcnt lgkmcnt(0)")
            if "probe_xg" in opt: A(f"s_cmp_eq_u32 s{sXG}, {opt['probe_xg']}\ns_cmov_b32 s101, s98")
            else: A("s_mov_b32 s101, s98")
        if not stamps: return
        i = nst[0]; nst[0] += 1
        opt.setdefault("stamp_names", []).append(name)
        A(f"""s_memrealtime s[98:99]
              s_memtime s[100:101]
              s_waitcnt lgkmcnt(0)
              v_writelane_b32 v255, s98, {i}
              v_writelane_b32 v255, s100, {32+i}""")
    if stamps: V.alloc(1, at=255)
    def srd(base, ptr, size):
        A(f"s_mov_b64 {sr(base,2)}, {sr(ptr,2)}\ns_mov_b32 s{base+2}, {size}\ns_mov_b32 s{base+3}, 0x20000")
    def spin_head(lab):
        A(f"s_mov_b32 s{sCNT}, 0\n{lab}:")
    def spin_tail(lab):
        done = A.label("L_done")
        A(f"""s_cbranch_vccz {done}
              s_add_u32 s{sCNT}, s{sCNT}, 1
              s_cmp_lt_u32 s{sCNT}, {SPIN}
              s_cbranch_scc1 {lab}
              {done}:""")
    def retry(body):
        lab = A.label("L_spin")
        A(f"s_cbranch_vccnz {lab}\n{lab}_ok:")
        n0, v0, l0 = len(A.lines), A.vm, A.lg
        A(f"{lab}:\ns_mov_b32 s{sCNT}, 0\n{lab}_l:")
        body()
        A(f"""s_cbranch_vccz {lab}_ok
              s_add_u32 s{sCNT}, s{sCNT}, 1
              s_cmp_lt_u32 s{sCNT}, {SPIN}
              s_cbranch_scc1 {lab}_l
              s_branch {lab}_ok""")
        cold.lines += A.lines[n0:]; del A.lines[n0:]
        A.vm, A.lg = v0, l0
    def poll(body):
        lab = A.label("L_poll")
        A(f"s_mov_b32 s{sCNT}, {SPIN}\n{lab}:\ns_sub_u32 s{sCNT}, s{sCNT}, 1\ns_cbranch_scc1 {lab}_out")
        body()
        A(f"s_cbranch_vccnz {lab}\n{lab}_out:")
    def any_sentinel(regs, tmp):
        regs = list(regs)
        if len(regs) == 1:
            A(f"v_cmp_eq_u32 vcc, -1, v{regs[0]}"); return
        cur = regs.pop(0)
        while regs:
            if len(regs) >= 2:
                A(f"v_max3_u32 v{tmp}, v{cur}, v{regs[0]}, v{regs[1]}"); regs = regs[2:]
            else:
                A(f"v_max_u32 v{tmp}, v{cur}, v{regs[0]}"); regs = regs[1:]
            cur = tmp
        A(f"v_cmp_eq_u32 vcc, -1, v{tmp}")
    def both_paths(fn, B=None):
        B = B or A
        slow, done = A.label("L_slow"), A.label("L_join")
        v0 = B.vm
        B(f"s_cmp_eq_u32 s{sFAST}, 0\ns_cbranch_scc1 {slow}")
        n0 = len(B.lines); fn(" sc1")
        cold.lines += [f"{slow}:"] + B.lines[n0:] + ["    s_nop 1", f"    s_branch {done}"]; del B.lines[n0:]
        B.vm = v0
        fn("")
        B(f"{done}:")
    def rbf(dst, src):
        A(f"v_cvt_pk_bf16_f32 v{dst}, v{src}, v{src}\nv_and_b32 v{dst}, 0xffff0000, v{dst}")
    def ln_chain(s1, s2, m, rs, t):
        A(f"""v_mul_f32 v{m}, {f32(1/1024)}, v{s1}
              v_mul_f32 v{t}, {f32(1/1024)}, v{s2}
              v_fma_f32 v{t}, -v{m}, v{m}, v{t}
              v_max_f32 v{t}, 0, v{t}""")
        rbf(t, t)
        A(f"v_add_f32 v{t}, {f32(1e-5)}, v{t}")
        rbf(t, t)
        A(f"v_sqrt_f32 v{t}, v{t}")
        rbf(m, m)
        rbf(t, t)
        A(f"v_rcp_f32 v{rs}, v{t}")

    A.c("---- entry: ids, code warm-up, first loads ----")
    t0, t1, t2, t3, vL16, IDX = 2, 3, 4, 5, 6, 7
    Q, SA, SB, O, L, SEL = 8, 40, 56, 72, 136, 152
    vKV, aTr, vWo, vGu, vDn, KV = 156, 158, 160, 164, 168, 172
    ND = 5
    acc, cs, xf, qa = 8, 16, 40, 40
    vX, vWk, vM1, vP, aX, aW, st, aS, aC, aT, one, selK = 72, 80, 84, 82, 88, 92, 94, 96, 97, 98, 99, 100
    fa, fc, fs, m_, rs_ = 72, 104, 8, 16, 17
    vD, pk, fA, fC, fS, fK, fT, fR, vFl, vGo, vGa, aSt, aXc, aFl, vDum = 172, 180, 184, 185, 186, 187, 188, 189, 190, 191, 192, 193, 194, 195, 159
    aB, aA, idxC, selQ, qc, sv, ca, cb_ = 204, 216, 219, 220, 224, 228, 236, 240
    aQ = 252
    FB, WF = 0, 96
    sKo, sFo, sBase, sCur = 8, 9, 10, 11
    sK = 64
    sStep, sMask, sW8, sOff, sGu, sDn, sXr, sM0, sM1, sWo, sSt, sFl, sSl, sWv = 80, 81, 82, 83, 84, 86, 88, 89, 90, 91, 92, 93, 94, 95
    A(f"""s_cmp_ge_u32 s2, 256
          s_cbranch_scc1 L_end
          s_load_dwordx16 s[64:79], s[0:1], 0
          s_load_dwordx8 s[80:87], s[0:1], 64
          s_load_dwordx2 s[88:89], s[0:1], 96
          s_getpc_b64 s[96:97]
          L_pc:
          v_lshrrev_b32 v{t0}, 6, v0
          v_and_b32 v{t1}, 3, v0
          s_lshr_b32 s{sT0}, s2, 3
          v_readfirstlane_b32 s{sW}, v{t0}
          s_lshl_b32 s{sT0}, s{sT0}, 4
          v_lshl_add_u32 v{t1}, v{t0}, 2, v{t1}
          v_add_lshl_u32 v{t1}, v{t1}, s{sT0}, 7
          v_min_u32 v{t1}, L_end-L_pc, v{t1}
          v_mov_b32 v{vP+1}, s97
          v_add_co_u32 v{vP}, vcc, s96, v{t1}
          v_and_b32 v1, 63, v0
          s_and_b32 s{sXG}, s2, 7
          v_addc_co_u32 v{vP+1}, vcc, 0, v{vP+1}, vcc
          global_load_dword v{vDum}, {vr(vP,2)}, off
          s_lshr_b32 s{sHG}, s2, 5
          s_bfe_u32 s{sT0}, s2, 0x20003
          s_lshl2_add_u32 s{sRB}, s{sXG}, s{sT0}
          s_lshl3_add_u32 s{sLID}, s{sRB}, s{sHG}
          s_and_b32 s{sKQ}, s{sHG}, 3
          s_and_b32 s{sCNT}, s{sHG}, 1
          v_lshlrev_b32 v{vL16}, 4, v1
          v_lshrrev_b32 v{t0}, 5, v1
          v_and_b32 v{t1}, 31, v1
          v_lshlrev_b32 v{t2}, 7, v{t1}
          v_xor_b32 v{t1}, v{t1}, v{t0}
          v_lshlrev_b32 v{t1}, 4, v{t1}
          v_lshl_add_u32 v{vX}, v{t0}, 11, v{t1}
          s_lshl_b32 s{sT1}, s{sCNT}, 7
          v_xor_b32 v{vX}, s{sT1}, v{vX}""")
    if stamps: A("v_mov_b32 v255, 0")
    for i in range(1, 4): A(f"v_xor_b32 v{vX+i}, {32*i}, v{vX}\nv_add_u32 v{vX+i}, {3072*i}, v{vX+i}")
    for i in range(4): A(f"v_xor_b32 v{vX+4+i}, 128, v{vX+i}")
    for i in range(4): A(f"v_mov_b32 v{vM1+i}, -1")
    A(f"""s_lshr_b32 s90, s{sHG}, 1
          s_lshl2_add_u32 s91, s90, s{sT0}
          s_lshl_b32 s91, s91, 12
          s_lshl_b32 s90, s90, 15
          s_lshl_b32 s92, s{sRB}, 17
          s_add_u32 s90, s90, s92
          s_lshl_b32 s92, s{sW}, 9
          s_add_u32 s90, s90, s92
          s_lshl_b32 s92, s{sCNT}, 14
          s_add_u32 s90, s90, s92
          s_xor_b32 s92, s90, 0x4000
          s_mul_i32 s{sSl}, s{sW}, {SLOT}
          s_lshl_b32 s93, s{sCNT}, 12
          s_add_u32 s93, s93, s{sSl}
          s_lshl_b32 s{sT0}, s2, 13
          s_bfe_u32 s{sT1}, s{sW}, 0x10001
          s_lshl_b32 s{sT1}, s{sT1}, 12
          s_add_u32 s{sWv}, s{sT0}, s{sT1}
          s_mov_b32 m0, s93
          s_mov_b32 s{X+2}, 0x400000
          s_mov_b32 s{X+3}, 0x20000
          s_mov_b32 s{WKV+2}, 0x10000
          s_mov_b32 s{WKV+3}, 0x20000
          s_mov_b32 s{DM+3}, 0x20000
          s_mov_b32 s{WS+2}, {WS_SIZE}
          s_mov_b32 s{WS+3}, 0x20000
          s_waitcnt lgkmcnt(0)""")
    stamp("karg")
    A.c("wave 0 pulls a share of wk/wv into this XCD's L2, the others a share of wq into the memory-side cache")
    A(f"""s_mov_b64 {sr(X,2)}, s[64:65]
          s_cmp_eq_u32 s{sCNT}, 1
          s_cselect_b64 {sr(WKV,2)}, s[70:71], s[68:69]
          s_mov_b32 s{DM+2}, 0x200000
          s_cmp_eq_u32 s{sW}, 0
          s_cselect_b64 {sr(DM,2)}, {sr(WKV,2)}, s[66:67]
          s_cmov_b32 s{DM+2}, 0x10000
          s_cmov_b32 s{sWv}, s91
          s_mov_b64 {sr(WS,2)}, s[88:89]""")
    PFW = opt.get("pf_when", 0)
    pfi = f"buffer_load_dword v{vDum}, v{t2}, {sr(DM,4)}, s{sWv} offen"
    if PFW == 0: A(pfi)
    A.c("workgroups 0..7 (wave 3) clear the flag lines first")
    A(f"""s_cmp_eq_u32 s{sW}, 3
          s_cselect_b32 s{sFAST}, s2, 255
          s_cmp_lt_u32 s{sFAST}, 8
          s_cbranch_scc0 L_noclr
          s_mul_i32 s{sT0}, s2, 3072
          s_add_u32 s{sT0}, s{sT0}, {WS_FL}""")
    for i in range(3): A(f"buffer_store_dwordx4 {vr(vM1,4)}, v{vL16}, {sr(WS,4)}, s{sT0} offen offset:{1024*i} sc1")
    A("L_noclr:")
    for i in range(8):
        if i == 4:
            if PFW == 1: A(pfi)
            A("s_xor_b32 m0, s93, 0x1000\ns_nop 0")
        A(f"buffer_load_dwordx4 v{vX+i}, {sr(X,4)}, s{90 if i < 4 else 92} offen offset:{1024*(i&3)}{opt.get('x_nt', ' nt')} lds")
    tx = A.tv()
    if PFW == 2: A(pfi)
    stamp("iss0")
    A.c("---- set-up while the first loads fly: descriptors, roles, addresses, constants ----")
    srd(WO, 72, 0x200000); srd(WR, 76, 2048); srd(OUT, 84, 0x400000); srd(DBG, 86, 256)
    A(f"""s_getreg_b32 s{sXCC}, hwreg(HW_REG_XCC_ID)
          s_and_b32 s{sXCC}, s{sXCC}, 0xff
          s_or_b32 s{sXCC}, s{sXCC}, 0x100
          s_and_b32 s{sT0}, s{sRB}, 3
          s_lshr_b32 s{sT1}, s{sHG}, 2
          s_lshl1_add_u32 s{sT0}, s{sT0}, s{sT1}
          s_mul_i32 s{sCB}, s{sXG}, 7
          s_add_u32 s{sCB}, s{sCB}, s{sT0}
          s_lshl2_add_u32 s{sT1}, s{sXG}, s{sKQ}
          s_cmp_eq_u32 s{sT0}, 7
          s_cselect_b32 s{sRED}, 1, 0
          s_cselect_b32 s{sCB}, s{sT1}, s{sCB}
          s_cselect_b32 s{sT0}, 0, 0x700000""")
    for b_, p_ in ((GA, 78), (UP, 80), (DN, 82)): srd(b_, p_, f"s{sT0}")
    A.c("Q-chunk DMA: wave 0 -> x rows, waves 1,2 -> wq rows")
    A(f"""s_lshl_b32 s{sXr}, s{sRB}, 17
          s_lshl_b32 s{sT0}, s{sHG}, 8
          s_lshl_b32 s{sT1}, s{sW}, 16
          s_add_u32 s{sT0}, s{sT0}, s{sT1}
          s_sub_u32 s{sBase}, s{sT0}, 0x10000
          s_mov_b32 s{sStep}, 0x20000
          s_mov_b32 s{sMask}, 0x1fffff
          s_mov_b32 s{sT1}, 8192
          s_cmp_eq_u32 s{sW}, 0
          s_cmov_b64 {sr(DM,2)}, {sr(X,2)}
          s_cmov_b32 s{DM+2}, 0x400000
          s_cmov_b32 s{sStep}, 128
          s_cmov_b32 s{sMask}, 2047
          s_cmov_b32 s{sT1}, 16384
          s_cmov_b32 s{sBase}, s{sXr}
          s_cselect_b32 s{sT0}, 64, 0
          s_cselect_b64 vcc, -1, 0
          v_lshlrev_b32 v{t0}, 5, v{t0}
          v_xor_b32 v{vWk}, v{vL16}, v{t0}
          v_lshrrev_b32 v{t0}, 4, v1
          v_and_b32 v{t1}, 7, v1
          v_lshlrev_b32 v{vGa}, 5, v{t1}
          v_lshlrev_b32 v{aXc}, 4, v{t1}
          v_xor_b32 v{t1}, v{t1}, v{t0}
          v_lshlrev_b32 v{t1}, 4, v{t1}
          v_lshrrev_b32 v{t2}, 3, v1
          v_lshl_add_u32 v{t1}, v{t2}, 11, v{t1}
          v_and_b32 v{t2}, 15, v1
          v_lshlrev_b32 v{t3}, 2, v{t0}
          v_xor_b32 v{t2}, v{t2}, v{t3}
          v_lshlrev_b32 v{t2}, 4, v{t2}
          v_lshl_add_u32 v{t2}, v{t0}, 11, v{t2}
          v_cndmask_b32 v{vD}, v{t2}, v{t1}, vcc
          v_xor_b32 v{t0}, s{sT0}, v{vD}""")
    for i in range(1, 8):
        A(f"s_mul_i32 s{sT0}, s{sT1}, {i}")
        if i & 3: A(f"s_sub_u32 s{sT0}, s{sT0}, {1024*(i&3)}")
        A(f"v_add_u32 v{vD+i}, s{sT0}, v{t0 if i & 1 else vD}")
    rh, rr, rx = opt.get("rot", (2, 4, 0))
    A(f"""s_mul_i32 s{sT0}, s{sHG}, {rh}
          s_mul_i32 s{sT1}, s{sRB}, {rr}
          s_cmp_eq_u32 s{sKQ}, 1
          s_cselect_b32 s{sT1}, s{sT1}, 0
          s_add_u32 s{sT0}, s{sT0}, s{sT1}
          s_mul_i32 s{sT1}, s{sXG}, {rx}
          s_add_u32 s{sT0}, s{sT0}, s{sT1}
          s_and_b32 s{sT0}, s{sT0}, 15
          s_mul_i32 s{sCur}, s{sT0}, s{sStep}
          s_lshl_b32 s{sW8}, s{sW}, 13
          s_lshl_b32 s0, s{sW}, 14
          s_add_u32 s{sM0}, s0, {RING}
          s_xor_b32 s{sT0}, s0, 0x4000
          s_add_u32 s{sT0}, s{sT0}, {RING}
          v_add_u32 v{aQ}, s{sM0}, v{vL16}
          v_add_u32 v{aQ+1}, s{sT0}, v{vL16}""")
    A.c("K/V stage and finaliser addresses")
    A(f"""v_and_b32 v{t0}, 15, v1
          v_lshrrev_b32 v{t1}, 4, v1
          v_xor_b32 v{t2}, v{t0}, v{t1}
          v_lshlrev_b32 v{t2}, 4, v{t2}
          v_lshl_add_u32 v{t2}, v{t0}, 9, v{t2}
          v_add_u32 v{aX}, s{sSl}, v{t2}""")
    for i in range(1, 4): A(f"v_xor_b32 v{aX+i}, {64*i}, v{aX}")
    A(f"""v_bfe_u32 v{t2}, v1, 2, 2
          v_lshl_add_u32 v{t2}, v{t1}, 3, v{t2}
          v_lshlrev_b32 v{t2}, 6, v{t2}
          v_and_b32 v{t3}, 3, v1
          v_lshl_add_u32 v{t2}, v{t3}, 3, v{t2}
          v_and_b32 v{t3}, 1, v{t1}
          v_lshl_add_u32 v{t2}, v{t3}, 5, v{t2}
          s_add_u32 s{sT0}, s{sSl}, 8192
          v_add_u32 v{aW}, s{sT0}, v{t2}
          v_xor_b32 v{aW+1}, 32, v{aW}
          s_lshl_b32 s{sT0}, s{sW}, 11
          s_add_u32 s{sT0}, s{sT0}, {SCR_A}
          v_add_u32 v{aS}, s{sT0}, v{vL16}
          s_lshl_b32 s{sT0}, s{sW}, 7
          s_add_u32 s{sT1}, s{sT0}, {SCR_C}
          v_lshl_add_u32 v{aC}, v{t0}, 2, s{sT1}
          s_add_u32 s{sT1}, s{sT0}, {SCR_ST}
          v_lshl_add_u32 v{aT}, v{t0}, 3, s{sT1}
          v_lshlrev_b32 v{t2}, 2, v{t0}
          v_lshl_add_u32 v{aSt}, v{t3}, 7, v{t2}
          v_lshlrev_b32 v{aFl}, 4, v0
          v_mov_b32 v{one}, 0x3f803f80
          v_mov_b64 {vr(st,2)}, 0
          v_cmp_gt_u32 vcc, 2, v{t0}
          v_and_b32 v{t2}, 14, v1
          v_cmp_eq_u32 s[{EX}:{EX+1}], 4, v{t2}""")
    for i in range(4): A(f"v_cndmask_b32 v{selK+i}, 0, v{one}, vcc")
    A(f"""v_mov_b64 {vr(selQ,2)}, {vr(selK,2)}
          v_cndmask_b32 v{selQ+2}, 0, v{one}, s[{EX}:{EX+1}]
          v_cndmask_b32 v{selQ+3}, 0, v{one}, s[{EX}:{EX+1}]
          v_cmp_eq_u32 vcc, 0, v{t0}
          v_cmp_eq_u32 s[{EX}:{EX+1}], 4, v{t0}
          v_and_b32 v{t2}, 1, v1
          v_cndmask_b32 v{SEL}, 0, v{one}, vcc
          v_cndmask_b32 v{SEL+1}, 0, v{one}, vcc
          v_cndmask_b32 v{SEL+2}, 0, v{one}, s[{EX}:{EX+1}]
          v_cndmask_b32 v{SEL+3}, 0, v{one}, s[{EX}:{EX+1}]
          v_mul_u32_u24 v{t2}, 0xaaaa, v{t2}
          v_add_u32 v{idxC}, 0x4444, v{t2}
          v_mov_b32 v{IDX}, 0xdddddddd""")
    for r_ in (cs, cs+2, cs+4, cs+6, qc, qc+2, ca+2, cb_+2, cb_+6): A(f"v_mov_b64 {vr(r_,2)}, 0")
    A(f"""v_and_b32 v{t2}, 31, v1
          v_lshrrev_b32 v{t1}, 5, v1
          v_lshl_add_u32 v{t2}, v{t1}, 6, v{t2}
          v_lshlrev_b32 v{t2}, 4, v{t2}
          v_add_u32 v{fA}, {SCR_A}, v{t2}
          v_lshl_add_u32 v{t2}, v{t1}, 2, v{t3}
          v_lshlrev_b32 v{t2}, 4, v{t2}
          v_add_u32 v{fC}, {SCR_C}, v{t2}
          v_lshlrev_b32 v{t2}, 3, v{t0}
          v_add_u32 v{fS}, {SCR_ST}, v{t2}
          v_lshl_add_u32 v{t2}, v{t3}, 5, v{t0}
          v_lshl_add_u32 v{t2}, v{t1}, 6, v{t2}
          v_lshlrev_b32 v{fK}, 4, v{t2}
          v_lshlrev_b32 v{t0}, 6, v{t0}
          v_lshl_add_u32 v{t0}, v{t1}, 5, v{t0}
          v_lshl_add_u32 v{t0}, v{t3}, 3, v{t0}
          v_add_u32 v{fT}, {SCR_T}, v{t0}
          v_bfe_u32 v{t0}, v1, 2, 2
          v_lshl_add_u32 v{t2}, v{t1}, 3, v{t0}
          v_lshlrev_b32 v{fR}, 6, v{t2}
          v_lshlrev_b32 v{aA}, 8, v{t2}
          v_lshl_add_u32 v{t2}, v{t1}, 2, v{t0}
          v_lshlrev_b32 v{aTr}, 6, v{t2}
          v_xor_b32 v{t0}, s{sW}, v{t0}
          v_lshl_add_u32 v{aA}, v{t0}, 6, v{aA}
          v_lshl_add_u32 v{aTr}, v{t3}, 5, v{aTr}
          v_and_b32 v{t2}, 3, v1
          v_lshlrev_b32 v{t2}, 3, v{t2}
          v_lshl_add_u32 v{t2}, v{t3}, 5, v{t2}
          v_add_u32 v{fR}, v{fR}, v{t2}
          v_add_u32 v{fR}, {SCR_T}, v{fR}
          v_add_u32 v{t2}, v{aA}, v{t2}
          v_add_u32 v{aA}, 8192, v{t2}
          v_add_u32 v{aA+1}, {8192 + 2*SLOT}, v{t2}
          v_add_u32 v{aA+2}, {8192 + 4*SLOT}, v{t2}
          v_and_b32 v{t2}, 1, v1
          v_lshl_add_u32 v{aTr}, v{t2}, 4, v{aTr}
          v_bfe_u32 v{t2}, v1, 1, 1
          v_lshl_add_u32 v{aTr}, v{t2}, 3, v{aTr}
          v_add_u32 v{aTr}, s{sM0}, v{aTr}
          s_lshl_b32 s{sKo}, s{sRB}, 13
          s_lshr_b32 s{sT1}, s{sHG}, 2
          s_lshl_b32 s{sT1}, s{sT1}, 12
          s_add_u32 s{sKo}, s{sKo}, s{sT1}
          s_bfe_u32 s{sT1}, s{sHG}, 0x10001
          s_lshl_b32 s{sT0}, s{sT1}, 8
          s_lshl_b32 s{sT1}, s{sT1}, 10
          s_add_u32 s{sT1}, s{sT1}, 2048
          s_bitcmp1_b32 s{sHG}, 0
          s_cselect_b32 s{sT0}, s{sT1}, s{sT0}
          s_cselect_b64 vcc, -1, 0
          s_add_u32 s{sKo}, s{sKo}, s{sT0}
          v_cndmask_b32 v{fK}, v{fK}, v{vL16}, vcc
          s_mov_b32 s{sFl}, {WS_F2}
          s_lshl_b32 s{sFo}, s{sLID}, 6
          s_add_u32 s{sFo}, s{sFo}, {WS_FL}
          s_lshl_b32 s{sSt}, s{sRB}, 9
          s_add_u32 s{sSt}, s{sSt}, {WS_FL}
          s_lshl_b32 s{sT0}, s{sRB}, 7
          v_add_u32 v{aXc}, s{sT0}, v{aXc}
          v_and_b32 v{t0}, 31, v1
          v_bfe_u32 v{t2}, v1, 1, 3
          v_xor_b32 v{t2}, v{t2}, v{t1}
          v_lshlrev_b32 v{t2}, 4, v{t2}
          v_lshl_add_u32 v{aB}, v{t0}, 7, v{t2}""")
    for s_ in range(1, 4): A(f"v_xor_b32 v{aB+s_}, {32*s_}, v{aB}")
    for g in range(1, 3):
        for s_ in range(4): A(f"v_add_u32 v{aB+4*g+s_}, {2*SLOT*g}, v{aB+s_}")
    def wdma(i):
        out = []
        if i % 4 == 0: out += [f"s_add_u32 m0, s{sSl}, {8192 + 1024*i}", f"s_add_u32 s{sWv}, s0, {1024*i}"]
        return out + [f"buffer_load_dwordx4 v{vWk}, {sr(WKV,4)}, s{sWv} offen offset:{1024*(i&3)} lds"]
    NW0 = opt.get("w_early", 2)
    for i in range(NW0): A("\n".join(wdma(i)))
    A.c("attention-phase addresses and constants")
    A(f"""v_lshlrev_b32 v{t3}, 1, v{t1}
          v_xor_b32 v{t2}, v{t0}, v{t3}
          v_lshlrev_b32 v{t2}, 4, v{t2}
          v_lshl_add_u32 v{vDn}, v{t1}, 11, v{t2}
          v_xor_b32 v{t2}, 64, v{vDn}
          v_add_u32 v{vDn+1}, 3072, v{t2}
          v_add_u32 v{vDn+2}, 6144, v{vDn}
          v_add_u32 v{vDn+3}, 9216, v{t2}
          s_lshl_b32 s{sT0}, s{sHG}, 8
          s_lshl_b32 s{sT1}, s{sW}, 6
          s_add_u32 s{sT0}, s{sT0}, s{sT1}
          v_lshrrev_b32 v{t0}, 2, v1
          v_and_b32 v{t1}, 3, v1
          v_lshlrev_b32 v{t2}, 4, v{t1}
          v_lshl_add_u32 v{t2}, v{t0}, 11, v{t2}
          v_add_u32 v{vWo}, s{sT0}, v{t2}""")
    for j in range(1, 4): A(f"v_add_u32 v{vWo+j}, {31744*j}, v{vWo}")
    A(f"""v_lshrrev_b32 v{t0}, 3, v1
          v_mul_u32_u24 v{t0}, 7168, v{t0}
          v_bfe_u32 v{t2}, v1, 4, 1
          v_lshlrev_b32 v{t2}, 1, v{t2}
          v_and_b32 v{t3}, 7, v1
          v_xor_b32 v{t2}, v{t2}, v{t3}
          v_lshl_add_u32 v{vGu}, v{t2}, 4, v{t0}
          v_xor_b32 v{t0}, 64, v{vGu}
          v_add_u32 v{vGu+1}, {8*7168-1024}, v{t0}
          v_add_u32 v{vGu+2}, {16*7168-2048}, v{vGu}
          v_add_u32 v{vGu+3}, {24*7168-3072}, v{t0}
          s_mov_b32 s{sM1}, s{sW8}
          s_lshl2_add_u32 s{sT0}, s{sKQ}, s{sW}
          s_mul_i32 s{sT0}, s{sT0}, {64*7168}
          s_lshl_b32 s{sT1}, s{sCB}, 7
          s_add_u32 s{sGu}, s{sT0}, s{sT1}
          s_add_u32 s{sGu+1}, s{sGu}, {32*7168}
          s_lshl2_add_u32 s{sT0}, s{sCB}, s{sW}
          s_lshl_b32 s{sT0}, s{sT0}, 15
          s_lshl_b32 s{sT1}, s{sKQ}, 9
          s_add_u32 s{sDn}, s{sT0}, s{sT1}
          s_add_u32 s{sDn+1}, s{sDn}, 16384
          s_and_b32 s{sT0}, s{sW}, 1
          s_lshl_b32 s{sT0}, s{sT0}, 17
          v_add_u32 v{vKV}, s{sT0}, v{vL16}
          v_add_u32 v{vKV+1}, 0x10000, v{vKV}""")
    for i in range(1, 16): A(f"s_mov_b32 s{sK+i}, {4096*i}")
    for i in range(0, 16, 2): A(f"v_mov_b64 {vr(L+i,2)}, 0")
    stamp("setup")
    for i in range(NW0, 4): A("\n".join(wdma(i)))

    A.c("---- K/V stage: 16 rows x 32 columns per workgroup, K split over the waves ----")
    A.wait_vm(tx)
    stamp("x16")
    tk = []
    for s in range(8):
        A(f"ds_read_b128 {vr(xf+4*s,4)}, v{aX+(s&3)} offset:{256*(s>>2)}"); tk.append(A.tl())
    A.c("flag lines are cleared: raise 'go'")
    A(f"""s_cmp_lt_u32 s{sFAST}, 8
          s_cbranch_scc0 L_nogo
          s_lshl_b32 s{sT0}, s2, 5
          s_mov_b64 exec, 1
          buffer_store_dword v{vM1}, v{vL16}, {sr(DBG,4)}, s{sT0} offen sc1
          s_mov_b64 exec, -1
          L_nogo:""")
    A.vm -= 1
    wi = 4; tw = {}
    for s in range(8):
        if s % 2 == 0: A.wait_lg(tk[s+1])
        for i in range(4):
            A(f"v_dot2c_f32_bf16 v{st}, v{one}, v{xf+4*s+i}\nv_dot2c_f32_bf16 v{st+1}, v{xf+4*s+i}, v{xf+4*s+i}")
            if (i == 3 or (i == 1 and s % 2 == 0)) and wi < 16:
                A("\n".join(wdma(wi))); tw[wi] = A.tv(); wi += 1
    assert wi == 16
    for sw in ("16", "32"):
        A(f"""v_mov_b32 v{t0}, v{st}
              v_mov_b32 v{t1}, v{st+1}
              v_permlane{sw}_swap_b32 v{st}, v{t0}
              v_permlane{sw}_swap_b32 v{st+1}, v{t1}
              v_add_f32 v{st}, v{st}, v{t0}
              v_add_f32 v{st+1}, v{st+1}, v{t1}""")
    A(f"ds_write_b64 v{aT}, {vr(st,2)}")
    stamp("stats")
    def wreads(s):
        for c in range(2):
            for t in range(2):
                A(f"ds_read_b64_tr_b16 {ar(WF+32*c+4*s+2*t,2)}, v{aW+c} offset:{2048*s+256*t}")
        return A.tl()
    def wmfma(s):
        out = []
        for c in range(2):
            for k in (s, s + 1):
                out.append(f"v_mfma_f32_16x16x32_bf16 {vr(acc+4*c,4)}, {ar(WF+32*c+4*k,4)}, {vr(xf+4*k,4)}, " + (vr(acc+4*c,4) if k else "0"))
            out.append(f"v_smfmac_f32_16x16x64_bf16 {vr(cs+4*c,4)}, {vr(selK,4)}, {ar(WF+32*c+4*s,8)}, v{idxC}")
        return out
    class Stream:
        def __init__(self): self.n = 0; self.tick = {}
        def issue(self, k=1, upto=15):
            for _ in range(k):
                c, i = divmod(self.n, 8)
                if c > upto or c > 15: return
                slot = (4 + c) % 6
                if i == 0: A(f"s_add_u32 m0, s{sW8}, {slot*SLOT}\ns_add_u32 s{sOff}, s{sBase}, s{sCur}")
                if i == 4: A(f"s_add_u32 m0, s{sW8}, {slot*SLOT + 4096}\ns_add_u32 s{sCur}, s{sCur}, s{sStep}")
                if not ("D" in opt.get("abl", "") and c > 4): A(f"buffer_load_dwordx4 v{vD+i}, {sr(DM,4)}, s{sOff} offen offset:{1024*(i&3)} lds")
                if i == 7:
                    A(f"s_and_b32 s{sCur}, s{sCur}, s{sMask}"); self.tick[c] = A.tv()
                    if "H" in opt.get("abl", "") and c % 4 == 3: A(f"s_mov_b32 s{sCur}, 0")
                self.n += 1
    class NoStream:
        tick = {}
        def issue(self, k=1, upto=15): pass
    def kvstage(S):
        S.issue(8)
        A.wait_vm(tw[7])
        wreads(0); t01 = wreads(1); wreads(2)
        A.wait_lg(t01); t23 = wreads(3)
        for m in wmfma(0): A(m); S.issue(1, 1)
        A.wait_lg(t23)
        for m in wmfma(2): A(m); S.issue(1, 1)
        A.wait_vm(tw[15])
        for s in range(4, 8): wreads(s)
        A("s_waitcnt lgkmcnt(0)\ns_barrier")
        for i, m in enumerate(wmfma(4) + wmfma(6)):
            A(m)
            if i % 2 == 0: S.issue(1, 2)
        S.issue(2, 2)
        A(f"""ds_write_b128 v{aS}, {vr(acc,4)}
              ds_write_b128 v{aS}, {vr(acc+4,4)} offset:1024
              v_add_f32 v{cs}, v{cs}, v{cs+1}
              v_add_f32 v{cs+4}, v{cs+4}, v{cs+5}
              s_mov_b64 exec, 0xffff
              ds_write2_b32 v{aC}, v{cs}, v{cs+4} offset1:16
              s_mov_b64 exec, -1
              s_waitcnt lgkmcnt(0)
              s_barrier""")
    def qreads(c):
        slot = (4 + c) % 6; g = slot // 2; o = (slot & 1) * SLOT; b = FB + 48 * (c & 1)
        out = []
        for s in range(4):
            for t in range(2): out.append(f"ds_read_b64_tr_b16 {ar(b+4*s+2*t,2)}, v{aA+g} offset:{o+4096*s+1024*t}")
            for rt in range(2): out.append(f"ds_read_b128 {ar(b+16+8*s+4*rt,4)}, v{aB+4*g+s} offset:{o+4096*rt}")
        return out
    def qmfma(c):
        b = FB + 48 * (c & 1); out = []
        for s in range(4):
            for rt in range(2):
                out.append(f"v_mfma_f32_32x32x16_bf16 {vr(qa+16*rt,16)}, {ar(b+4*s,4)}, {ar(b+16+8*s+4*rt,4)}, " + ("0" if c == 0 and s == 0 else vr(qa+16*rt,16)))
            if s & 1: out.append(f"v_smfmac_f32_16x16x64_bf16 {vr(qc,4)}, {vr(selQ,4)}, {ar(b+4*(s-1),8)}, v{idxC}")
        return out
    def kvreg(t, f): return KV + 16 * (t % ND) + 4 * f
    tick = {}
    def kvload(t, f):
        if t >= 32: return
        so = "0" if t % 16 == 0 else f"s{sK + t % 16}"
        if opt.get("halfkv") and t >= 8 and t % opt["halfkv"]:
            tick[(t, f)] = A.tv(); return
        A(f"buffer_load_dwordx4 {vr(kvreg(t,f),4)}, v{vKV + t//16}, {sr(WS,4)}, {so} offen offset:{1024*f}")
        tick[(t, f)] = A.tv()
    def polls():
        for i in range(4): A(f"buffer_load_dword v{sv+i}, v{aSt}, {sr(WS,4)}, s{sSt} offen offset:{256*(i>>1)+64*(i&1)} sc1")
        A(f"buffer_load_dword v{sv+4}, v{aXc}, {sr(WS,4)}, s{sFl} offen sc1")
        A(f"buffer_load_dword v{sv+5}, v{aFl}, {sr(WS,4)}, s{sFl} offen sc1")
    QUOTA = opt.get("quota", 7); PRE = opt.get("pre", 16)
    POLLC = opt.get("poll_chunk", 11); CHKC = opt.get("chk_chunk", 13); JOIN = CHKC + 1
    NE = opt.get('kv_early', 2)
    early = [(t, f) for t in range(NE) for f in range(4)]
    tp = {}
    sOst, sOfl, sOpl, sOsrc, sOrot, sWr, sTo, sBad = 12, 13, 14, 15, 48, 49, 50, 1
    qpre = f"""s_lshl2_add_u32 s{sTo}, s{sLID}, s{sW}
          s_lshl_b32 s{sOst}, s{sTo}, 12
          s_add_u32 s{sOst}, s{sOst}, {WS_O}
          s_lshl_b32 s{sOpl}, s{sRB}, 10
          s_add_u32 s{sOpl}, s{sOpl}, {WS_OF}
          s_lshl2_add_u32 s{sWr}, s{sHG}, s{sW}
          s_lshl4_add_u32 s{sOfl}, s{sWr}, s{sOpl}
          s_lshl_b32 s{sWr}, s{sWr}, 6
          s_lshl_b32 s{sOsrc}, s{sW}, 12
          s_add_u32 s{sOsrc}, s{sOsrc}, s{sXr}
          s_add_u32 s{sOsrc}, s{sOsrc}, {WS_O}
          s_lshl_b32 s{sOrot}, s{sHG}, 14
          s_lshl_b32 s8, s{sTo}, 8
          s_add_u32 s8, s8, {WS_ST}
          s_lshl_b32 s9, s{sTo}, 7
          s_add_u32 s9, s9, {WS_GU}
          s_add_u32 s10, s{sOfl}, 512
          s_mov_b32 s{sBad}, 0""".split("\n")
    sWst, sWfl, sWpl, vWt = 92, 93, 94, 254
    qpre += f"""s_lshl_b32 s{sWo}, s{sRB}, 16
          s_lshl_b32 s{sWst}, s{sHG}, 2
          s_sub_u32 s{sWst}, s{sRB}, s{sWst}
          s_and_b32 s{sWst}, s{sWst}, 31
          s_lshl_b32 s{sWst}, s{sWst}, 11
          s_lshl_b32 s{sWpl}, s{sWr}, 3
          s_add_u32 s{sWpl}, s{sWpl}, {WS_WF}
          s_lshl4_add_u32 s{sWfl}, s{sRB}, s{sWpl}
          s_lshl_b32 s0, s{sWr}, 10
          s_add_u32 s0, s0, {WS_WT}
          v_add_u32 v{vWt}, s0, v{vL16}""".split("\n")
    sOs = [None, 40, 41, 42, 43, 81, 83, 11]
    for p_ in range(1, 8): qpre += [f"s_add_u32 s{sOrot}, s{sOrot}, 0x4000", f"s_and_b32 s{sOrot}, s{sOrot}, 0x1ffff", f"s_add_u32 s{sOs[p_]}, s{sOsrc}, s{sOrot}"]
    def qiter(c, S):
        if c < 16:
            vm = f"vmcnt({A.vm - S.tick[c]}) " if c in S.tick else ""
            A(f"s_waitcnt {vm}lgkmcnt(0)\ns_barrier")
        else: A("s_waitcnt lgkmcnt(0)")
        if opt.get("qst") and isinstance(S, Stream) and c in (0, 4, 8, 12): stamp(f"b{c}")
        rd = qreads(c) if c < 16 else []
        abl = opt.get("abl", "")
        if "R" in abl and c > 1: rd = []
        if c == POLLC: polls(); tp[0] = A.tv()
        if c == 0:
            for i, r_ in enumerate(rd):
                A(r_)
                if i % 2 and i // 2 < QUOTA: S.issue(1, c + 5)
            return
        n = 0
        for i, m in enumerate(qmfma(c-1)):
            if not ("M" in abl and c > 1): A(m)
            if i < 8 and rd: A("\n".join(rd[2*i:2*i+2]))
            if i % 5 != 4 and n < QUOTA: S.issue(1, c + 5); n += 1
            if c >= JOIN and early and i % 2 == 1: kvload(*early.pop(0))
            for _ in range(2):
                if c >= JOIN and qpre: A(qpre.pop(0))
            if 5 <= c < 13 and i >= 6: A(f"v_mov_b64 {vr(O + 8*(c-5) + 2*(i-6), 2)}, 0")
        if c == CHKC:
            A.c("row statistics of this row block, group placement and all K/V flags have arrived?")
            A.wait_vm(tp[0]); any_sentinel(range(sv, sv+6), t0)
            retry(lambda: (polls(), A("s_waitcnt vmcnt(0)"), any_sentinel(range(sv, sv+6), t0)))
    A(f"s_cmp_eq_u32 s{sW}, 3\ns_cbranch_scc0 L_load")
    vm0, lg0 = A.vm, A.lg
    A.c("---- wave 3: clear this workgroup's share of the sentinel region; reduce the K-slices, LayerNorm, publish K or V ----")
    A(f"s_lshl_b32 s{sT0}, s2, 12\ns_add_u32 s{sT0}, s{sT0}, {WS_CLR}")
    for i in range(0 if opt.get("noclr") else 4): A(f"buffer_store_dwordx4 {vr(vM1,4)}, v{vL16}, {sr(WS,4)}, s{sT0} offen offset:{1024*i} sc1")
    N = NoStream()
    kvstage(N)
    for w in range(4): A(f"ds_read_b64 {vr(fs+2*w,2)}, v{fS} offset:{128*w}")
    tks = A.tl()
    for w in range(4):
        A(f"ds_read_b128 {vr(fc+8*w,4)}, v{fC} offset:{128*w}\nds_read_b128 {vr(fc+8*w+4,4)}, v{fC} offset:{128*w+32}")
    tkc = A.tl()
    A(f"buffer_load_dword v{vGo}, v{vGa}, {sr(DBG,4)}, 0 offen sc1")
    A.wait_lg(tks)
    for w in range(4):
        A(f"ds_read_b128 {vr(fa+8*w,4)}, v{fA} offset:{2048*w}\nds_read_b128 {vr(fa+8*w+4,4)}, v{fA} offset:{2048*w+512}")
    A(f"""v_pk_add_f32 {vr(fs,2)}, {vr(fs,2)}, {vr(fs+2,2)}
          v_pk_add_f32 {vr(fs+4,2)}, {vr(fs+4,2)}, {vr(fs+6,2)}
          v_pk_add_f32 {vr(fs,2)}, {vr(fs,2)}, {vr(fs+4,2)}""")
    ln_chain(fs, fs+1, m_, rs_, t0)
    def sum4(b):
        for i in range(0, 8, 2): A(f"v_pk_add_f32 {vr(b+i,2)}, {vr(b+i,2)}, {vr(b+8+i,2)}")
        for i in range(0, 8, 2): A(f"v_pk_add_f32 {vr(b+16+i,2)}, {vr(b+16+i,2)}, {vr(b+24+i,2)}")
        for i in range(0, 8, 2): A(f"v_pk_add_f32 {vr(b+i,2)}, {vr(b+i,2)}, {vr(b+16+i,2)}")
    A.wait_lg(tkc); sum4(fc)
    A.wait_lg(A.tl()); sum4(fa)
    for i in range(8): A(f"v_fma_f32 v{fa+i}, -v{m_}, v{fc+i}, v{fa+i}")
    for i in range(8): A(f"v_mul_f32 v{fa+i}, v{rs_}, v{fa+i}")
    for i in range(4): A(f"v_cvt_pk_bf16_f32 v{pk+i}, v{fa+2*i}, v{fa+2*i+1}")
    A(f"""v_min_u32 v{vFl}, -2, v{m_}
          s_bitcmp1_b32 s{sHG}, 0
          s_cbranch_scc0 L_fins
          ds_write_b64 v{fT}, {vr(pk,2)}
          ds_write_b64 v{fT}, {vr(pk+2,2)} offset:16
          v_min_u32 v{vFl}, -2, v{rs_}
          s_waitcnt lgkmcnt(0)
          ds_read_b64_tr_b16 {vr(pk,2)}, v{fR}
          ds_read_b64_tr_b16 {vr(pk+2,2)}, v{fR} offset:256
          s_waitcnt lgkmcnt(0)
          L_fins:
          buffer_store_dwordx4 {vr(pk,4)}, v{fK}, {sr(WS,4)}, s{sKo} offen sc1
          v_writelane_b32 v{vFl}, s{sXCC}, 16
          v_lshlrev_b32 v{fK}, 2, v1
          s_mul_i32 s{sT0}, s{sLID}, 48
          s_sub_u32 s{sT0}, 0x4000, s{sT0}
          v_writelane_b32 v{fK}, s{sT0}, 16""")
    stamp("kvst")
    FLAGC = opt.get("flag_chunk", 4)
    for c in range(JOIN):
        qiter(c, N)
        if c == FLAGC:
            A.c("K/V stores done and 'go' seen -> publish the flag line")
            A(f"s_waitcnt vmcnt(0)\nv_cmp_eq_u32 vcc, 0, v{vGo}")
            retry(lambda: A(f"buffer_load_dword v{vGo}, v{vGa}, {sr(DBG,4)}, 0 offen sc1\ns_waitcnt vmcnt(0)\nv_cmp_eq_u32 vcc, 0, v{vGo}"))
            A(f"""s_mov_b64 exec, 0x1ffff
                  buffer_store_dword v{vFl}, v{fK}, {sr(WS,4)}, s{sFo} offen sc1
                  s_mov_b64 exec, -1""")
            stamp("flag")
    A("s_branch L_q\nL_load:")
    A.vm, A.lg = vm0, lg0
    A.c("---- waves 0..2: K/V partials, then the Q projection (wave = head) with the LDS-DMA stream woven in ----")
    S = Stream()
    kvstage(S)
    stamp("barA")
    S.issue(PRE, 5)
    for c in range(JOIN):
        qiter(c, S)
        assert c + 1 in S.tick or c == 15, c
    assert S.n == 128, S.n
    A("L_q:")
    stamp("kvrdy")
    for c in range(JOIN, 17): qiter(c, S)
    while early: kvload(*early.pop(0))
    assert not qpre
    stamp("qmm")
    A.c("mean correction: column sums as three bf16 terms times -mean (exact in bf16); then 1/sigma and the softmax scale")
    CS = math.log2(math.e) / math.sqrt(32.0)
    A(f"""v_cmp_ne_u32 vcc, s{sXCC}, v{sv+4}
          v_cvt_pk_bf16_f32 v{cb_}, -v{sv}, -v{sv}
          v_cvt_pk_bf16_f32 v{cb_+4}, -v{sv+2}, -v{sv+2}
          s_cmp_eq_u64 vcc, 0
          s_cselect_b32 s{sFAST}, 1, 0
          v_mov_b32 v{cb_+1}, v{cb_}
          v_mov_b32 v{cb_+5}, v{cb_+4}
          v_mul_f32 v{t2}, {f32(CS)}, v{sv+1}
          v_mul_f32 v{t3}, {f32(CS)}, v{sv+3}
          v_add_f32 v{qc}, v{qc}, v{qc+1}
          v_cvt_pk_bf16_f32 v{ca}, v{qc}, v{qc}
          v_and_b32 v{t0}, 0xffff0000, v{ca}
          v_sub_f32 v{t0}, v{qc}, v{t0}
          v_cvt_pk_bf16_f32 v{ca}, v{qc}, v{t0}
          v_and_b32 v{t1}, 0xffff0000, v{ca}
          v_sub_f32 v{t0}, v{t0}, v{t1}
          v_cvt_pk_bf16_f32 v{ca+1}, v{t0}, 0""")
    if opt.get("force_slow"): A(f"s_mov_b32 s{sFAST}, 0")
    for rt in range(2):
        A(f"v_mfma_f32_32x32x16_bf16 {vr(qa+16*rt,16)}, {vr(ca,4)}, {vr(cb_+4*rt,4)}, {vr(qa+16*rt,16)}")
    late = [(t, f) for t in range(NE, 32) for f in range(4)]
    for _ in range(4): kvload(*late.pop(0))
    for rt in range(2):
        for i in range(0, 16, 2):
            A(f"v_pk_mul_f32 {vr(qa+16*rt+i,2)}, {vr(qa+16*rt+i,2)}, {vr(t2,2)} " + ("op_sel_hi:[1,0]" if rt == 0 else "op_sel:[0,1] op_sel_hi:[1,1]"))
        for i in range(8): A(f"v_cvt_pk_bf16_f32 v{Q+8*rt+i}, v{qa+16*rt+2*i}, v{qa+16*rt+2*i+1}")
        for j in range(2): A(f"ds_write_b128 v{aQ+1}, {vr(Q+8*rt+4*j,4)} offset:{2048*rt+1024*j}")
    stamp("qdone")

    A.c("---- attention: a wave pair shares two heads x 64 queries; each wave takes all four 32-query tiles over half the keys ----")
    A.c("S^T = K Q^T (log2 units, shift 0 as stand-in for the row max, checked below), P = exp2(S^T) in place;")
    A.c("the sparse MFMAs pick the high (bf16) half of each fp32 P register: O^T += V^T P, l += 1^T P")
    def qk(S, t, q, j):
        A(f"v_mfma_f32_32x32x16_bf16 {vr(S,16)}, {vr(kvreg(t,j),4)}, {vr(Q+8*q+4*j,4)}, " + (vr(S,16) if j else "0"))
    def pv(q, t, j, S): A(f"v_smfmac_f32_32x32x32_bf16 {vr(O+16*q,16)}, {vr(kvreg(t,2+j),4)}, {vr(S+8*j,8)}, v{IDX}")
    def su(q, j, S): A(f"v_smfmac_f32_16x16x64_bf16 {vr(L+4*q,4)}, {vr(SEL,4)}, {vr(S+8*j,8)}, v{IDX}")
    def ex(S, a, b):
        for i in range(a, b): A(f"v_exp_f32 v{S+i}, v{S+i}")
    PA, PB, PC, PD, PE, PX = opt.get("wt_at", (1, 12, 24, 48, 62, 100))
    nt = opt.get("moe_nt", " nt")
    bgq = {}
    tkb = {}
    def mark(k): return lambda: tkb.__setitem__(k, A.tv())
    bgq[PA] = [f"buffer_load_dwordx4 v{vWo+j}, {sr(WO,4)}, s{sWo} offen offset:{1024*j}{opt.get('wo_nt', ' nt')} lds" for j in range(2)] + [mark("a")]
    bgq[PB] = [lambda: A.wait_vm(tkb["a"])] + [f"ds_read_b64_tr_b16 {ar(2*i,2)}, v{aTr} offset:{8192+512*i}" for i in range(4)]
    bgq[PB+1] = ["s_waitcnt lgkmcnt(0)"] + [f"buffer_store_dwordx4 {ar(4*j,4)}, v{vWt}, {sr(WS,4)}, s{sWst} offen offset:{1024*j} sc1" for j in range(2)] + [mark("b")]
    bgq[PC] = [lambda: A.wait_vm(tkb["b"]), "s_mov_b64 exec, 1", f"buffer_store_dword v{vL16}, v{vL16}, {sr(WS,4)}, s{sWfl} offen sc1", "s_mov_b64 exec, -1"]
    bg2 = {}
    M0_, M1_ = opt.get("moe_at", (4, 64))
    mp = [M0_ + (M1_ - M0_) * i // 23 for i in range(24)]
    for kind, g in ([] if opt.get("nomoe") else [("g", 0), ("u", 0), ("g", 1), ("u", 1), ("d", 0), ("d", 1)]):
        bg2.setdefault(mp[0] - 1, []).append(f"s_add_u32 m0, s{sM1}, {dict(g=L_G, u=L_U, d=L_D)[kind] + 4096*g}")
        if kind == "d" and g == 1: bg2[mp[0]-1] += [f"v_xor_b32 v{vDn+i}, 128, v{vDn+i}" for i in range(4)]
        for j in range(4):
            bg2[mp.pop(0)] = [f"buffer_load_dwordx4 v{vDn+j}, {sr(DN,4)}, s{sDn+g} offen offset:{1024*j}{nt} lds" if kind == "d" else
                              f"buffer_load_dwordx4 v{vGu+j}, {sr(GA if kind == 'g' else UP,4)}, s{sGu+g} offen offset:{1024*j}{nt} lds"]
    wpoll = f"buffer_load_dword v{aTr}, v{vL16}, {sr(WS,4)}, s{sWpl} offen sc1"
    wtest = f"v_cmp_eq_u32 vcc, -1, v{aTr}\ns_lshl_b64 vcc, vcc, 32"
    bgq[PD] = [wpoll, mark("c")] + bgq.get(PD, [])
    bgq[PE] = bgq.get(PE, []) + [lambda: (A.wait_vm(tkb["c"]), A(wtest), retry(lambda: A(f"{wpoll}\ns_waitcnt vmcnt(0)\n{wtest}")))]
    for n in range(64):
        bgq.setdefault(PE + 1 + n * (opt.get('wt_end', 107) - PE) // 64, []).append(f"buffer_load_dwordx4 {ar(4*n,4)}, v{vWt}, {sr(WS,4)}, {'s'+str(sK+n//4) if n >= 4 else 0} offen offset:{1024*(n&3)}{opt.get('wt_fl', '')}")
    assert PA < M0_ - 1 and M1_ < PX
    bgq.setdefault(PX - 1, []).append(f"s_add_u32 m0, s{sM0}, 2048")
    bg2.update({PX + j: [f"buffer_load_dwordx4 v{vWo+j}, {sr(X,4)}, s{sXr} offen offset:{1024*j} lds", mark("x")] for j in range(4)})
    covered = [0]
    def vmwait(tk):
        A.wait_vm(tk); covered[0] = max(covered[0], tk)
    freed = set()
    def kvnext(k=1):
        for _ in range(k):
            if late and (late[0][0] < ND or (late[0][0] - ND, late[0][1]) in freed): kvload(*late.pop(0))
    A.wait_vm(tick[(0, 3)])
    qk(SA, 0, 0, 0); qk(SA, 0, 0, 1)
    A(f"s_add_u32 m0, s{sM0}, 8192\ns_waitcnt lgkmcnt(0)\ns_barrier")
    for i in range(4): A(f"ds_read_b128 {vr(Q+16+4*i,4)}, v{aQ} offset:{1024*i}")
    A(f"""s_getpc_b64 s[96:97]
          L_pc2:
          s_lshr_b32 s{sT1}, s2, 3
          s_lshl2_add_u32 s{sT1}, s{sT1}, s{sW}
          s_lshl_b32 s{sT1}, s{sT1}, 1
          v_and_b32 v{t1}, 1, v1
          v_add_lshl_u32 v{t1}, v{t1}, s{sT1}, 7
          v_min_u32 v{t1}, L_exact0-L_pc2, v{t1}
          v_mov_b32 v{t3}, s97
          v_add_co_u32 v{t2}, vcc, s96, v{t1}
          v_addc_co_u32 v{t3}, vcc, 0, v{t3}, vcc""")
    xr, rcv, rl, wr, aWr, aOr, vFo = O, 204, 254, 160, 168, 170, 171
    OF, oa = Q + 16, O + 32
    BFr = [220 + 4*k for k in range(8)] + [172 + 4*k for k in range(8)]
    def oread(n):
        hc, ks = divmod(n, 8)
        return f"ds_read_b128 {vr(BFr[n&15],4)}, v{aOr} offset:{16384*(ks>>1)+2048*(hc&7)+1024*(ks&1)}"
    def omfma(n):
        hc, ks = divmod(n, 8); d = vr(oa + 16*(hc >> 3), 16)
        return f"v_mfma_f32_32x32x16_bf16 {d}, {ar(32*(hc&7)+4*ks,4)}, {vr(BFr[n&15],4)}, " + (d if n else "0")
    def send(q):
        return [f"ds_write_b128 v{aQ}, {vr(O+16*q+4*k,4)} offset:{4096*q+1024*k}" for k in range(4)] + [f"ds_write_b32 v{aQ}, v{L+4*q} offset:{4096+1024*q}"]
    def recv(q):
        return ["s_waitcnt lgkmcnt(0)", "s_barrier", f"ds_read_b32 v{rl}, v{aQ+1} offset:{4096+1024*q}"] + [f"ds_read_b128 {vr(rcv+4*k,4)}, v{aQ+1} offset:{4096*q+1024*k}" for k in range(4)]
    otk = {}
    def odma(hc, j, B=None):
        B = B or A
        if j == 0: B(f"s_add_u32 m0, s{sM0}, {2048*(hc&7) - 2048*(hc>>3)}")
        else:
            B(f"buffer_load_dwordx4 v{vL16}, {sr(WS,4)}, s{sOs[hc&7]} offen offset:{2048*(hc>>3)+1024*(j-1)} sc1 lds")
            if B is A: otk[hc] = A.tv()
    def merge(q):
        return [f"v_add_f32 v{t0}, v{L+4*q}, v{rl}", f"v_mov_b32 v{t1}, v{t0}"] + \
               [f"v_pk_add_f32 {vr(O+16*q+i,2)}, {vr(O+16*q+i,2)}, {vr(rcv+i,2)}" for i in range(0, 4, 2)] + [f"v_permlane32_swap_b32 v{t0}, v{t1}"] + \
               [f"v_pk_add_f32 {vr(O+16*q+i,2)}, {vr(O+16*q+i,2)}, {vr(rcv+i,2)}" for i in range(4, 16, 2)] + \
               [f"v_subrev_u32 v{t1}, {f32(2.0**-64)}, v{t0}", f"v_cmp_lt_u32 vcc, 0x40000000, v{t1}"] + (["s_mov_b64 vcc, -1"] if q in opt.get("force_fallback", ()) else [])
    def scale(q, src):
        return [f"v_rcp_f32 v{t0}, v{t0}"] + [f"v_pk_mul_f32 {vr(src+i,2)}, {vr(src+i,2)}, {vr(t0,2)} op_sel_hi:[1,0]" for i in range(0, 16, 2)] + \
               [f"v_cvt_pk_bf16_f32 v{OF+8*q+i}, v{src+2*i}, v{src+2*i+1}" for i in range(8)]
    def ostore(q, B=None):
        both_paths(lambda sc: (B or A)("\n".join(f"buffer_store_dwordx4 {vr(OF+8*q+4*j,4)}, v{vL16}, {sr(WS,4)}, s{sOst} offen offset:{2048*q+1024*j}{sc}" for j in range(2))), B)
    def oown(q): return [f"ds_write_b128 v{aQ}, {vr(OF+8*q+4*j,4)} offset:{1024*j}" for j in range(2)]
    def oflag(q, B=None):
        (B or A)("s_mov_b64 exec, 1")
        both_paths(lambda sc: (B or A)(f"buffer_store_dword v{vL16}, v{vL16}, {sr(WS,4)}, s{sOfl} offen offset:{512*q}{sc}"), B)
        (B or A)("s_mov_b64 exec, -1")
    opoll = f"buffer_load_dword v{vFo}, v{vL16}, {sr(WS,4)}, s{sOpl} offen sc1"
    def ocheck(q, tk):
        half = f"s_lsh{'l' if q == 0 else 'r'}_b64 vcc, vcc, 32"
        A.wait_vm(tk)
        A(f"v_cmp_eq_u32 vcc, -1, v{vFo}\n{half}")
        retry(lambda: A(f"{opoll}\ns_waitcnt vmcnt(0)\nv_cmp_eq_u32 vcc, -1, v{vFo}\n{half}"))
    E = Asm(); E.nlab = 5000
    def exact(q, acc, kv):
        lab = f"L_exact{q}"
        E(f"""{lab}:
              s_waitcnt vmcnt(0) lgkmcnt(0)
              v_mov_b32 v{t0}, 0xff800000
              s_mov_b32 s{sT0}, 0
              {lab}a:
              buffer_load_dwordx4 {vr(kv,4)}, v{vL16}, {sr(WS,4)}, s{sT0} offen
              buffer_load_dwordx4 {vr(kv+4,4)}, v{vL16}, {sr(WS,4)}, s{sT0} offen offset:1024
              s_waitcnt vmcnt(0)
              v_mfma_f32_32x32x16_bf16 {vr(SA,16)}, {vr(kv,4)}, {vr(Q+8*q,4)}, 0
              v_mfma_f32_32x32x16_bf16 {vr(SA,16)}, {vr(kv+4,4)}, {vr(Q+8*q+4,4)}, {vr(SA,16)}""")
        for i in range(0, 16, 2): E(f"v_max3_f32 v{t0}, v{t0}, v{SA+i}, v{SA+i+1}")
        E(f"""s_add_u32 s{sT0}, s{sT0}, 4096
              s_cmp_lt_u32 s{sT0}, 0x40000
              s_cbranch_scc1 {lab}a
              v_mov_b32 v{t1}, v{t0}
              v_permlane32_swap_b32 v{t0}, v{t1}
              v_max_f32 v{t0}, v{t0}, v{t1}""")
        for i in range(16): E(f"v_sub_f32 v{SB+i}, 0, v{t0}")
        for i in range(0, 16, 2): E(f"v_mov_b64 {vr(acc+i,2)}, 0")
        for i in range(0, 4, 2): E(f"v_mov_b64 {vr(L+4*q+i,2)}, 0")
        E(f"s_mov_b32 s{sT0}, 0\n{lab}b:")
        for f in range(4): E(f"buffer_load_dwordx4 {vr(kv+4*f,4)}, v{vL16}, {sr(WS,4)}, s{sT0} offen offset:{1024*f}")
        E(f"""s_waitcnt vmcnt(0)
              v_mfma_f32_32x32x16_bf16 {vr(SA,16)}, {vr(kv,4)}, {vr(Q+8*q,4)}, {vr(SB,16)}
              v_mfma_f32_32x32x16_bf16 {vr(SA,16)}, {vr(kv+4,4)}, {vr(Q+8*q+4,4)}, {vr(SA,16)}""")
        for i in range(16): E(f"v_exp_f32 v{SA+i}, v{SA+i}")
        for j in range(2):
            E(f"v_smfmac_f32_32x32x32_bf16 {vr(acc,16)}, {vr(kv+8+4*j,4)}, {vr(SA+8*j,8)}, v{IDX}")
            E(f"v_smfmac_f32_16x16x64_bf16 {vr(L+4*q,4)}, {vr(SEL,4)}, {vr(SA+8*j,8)}, v{IDX}")
        E(f"""s_nop 7
              s_add_u32 s{sT0}, s{sT0}, 4096
              s_cmp_lt_u32 s{sT0}, 0x40000
              s_cbranch_scc1 {lab}b
              s_nop 7
              v_mov_b32 v{t0}, v{L+4*q}
              v_mov_b32 v{t1}, v{L+4*q}
              v_permlane32_swap_b32 v{t0}, v{t1}
              s_nop 1""")
    phases = [(t, q) for t in range(28) for q in ((0, 1, 2, 3) if t == 0 else (2, 3, 0, 1))]
    phases += [(28, 2), (28, 0), (29, 2), (29, 0), (30, 2), (31, 2), (30, 0), (31, 0)]
    phases += [(28, 3), (29, 3), (30, 3), (31, 3), (28, 1), (29, 1), (30, 1), (31, 1)]
    first = {}; last = {}
    for p, (t, q) in enumerate(phases): first.setdefault(t, p); last[t] = p
    hist_vm = []; tko = {}
    for p, (t, q) in enumerate(phases):
        Sc, Sn = (SA, SB) if p % 2 == 0 else (SB, SA)
        prv = phases[p-1] if p else None
        nxt = phases[p+1] if p < 127 else None
        hist_vm.append(A.vm)
        if p in opt.get("ast", ()): stamp(f"a{p}")
        if nxt and first[nxt[0]] == p + 1:
            vmwait(tick[(nxt[0], 3)])
        if p == 1: A("s_waitcnt lgkmcnt(0)")
        sp = [[], [], [], []]
        if p == opt.get("touch_at", 109):
            sp[0] = [f"v_and_b32 v{t0}, 31, v1", f"v_lshlrev_b32 v{t0}, 7, v{t0}", f"buffer_load_dword v{vDum}, v{t0}, {sr(WS,4)}, s{sOst} offen sc1"]
            sp[1] = [f"v_and_b32 v{t0}, 128, v{t0}", f"v_add_u32 v{t0}, s8, v{t0}", f"v_writelane_b32 v{t0}, s9, 2"]
            sp[2] = [f"v_writelane_b32 v{t0}, s10, 3", f"v_writelane_b32 v{t0}, s{sOfl}, 4", f"buffer_load_dword v{vDum}, v{t0}, {sr(WS,4)}, 0 offen sc1"]
        if p in opt.get("code_at", (20, 50, 80, 110)): sp[0] = [f"global_load_dword v{vDum}, {vr(t2,2)}, off"]
        if p == 110:
            sp[1] = [f"v_lshrrev_b32 v{aWr}, 5, v1", f"v_lshlrev_b32 v{aWr}, 4, v{aWr}"]
            sp[2], sp[3] = [[f"buffer_load_dwordx4 {vr(wr+4*k,4)}, v{aWr}, {sr(WR,4)}, s{sWr} offen offset:{32*k}"] for k in range(2)]
        if p == 118:
            assert tkb['x'] <= covered[0]
            sp[1], sp[2], sp[3] = send(2)[:1], send(2)[1:2], send(2)[2:3]
        if p == 119: sp[0], sp[1], sp[3] = send(2)[3:4], send(2)[4:], recv(2)
        if p == 120:
            sp[2] = ["s_waitcnt lgkmcnt(0)"] + merge(0) + [f"s_cmp_lg_u64 vcc, 0", f"s_cselect_b32 s{sBad}, 1, 0"] + scale(0, O) + [lambda: (ostore(0), tko.__setitem__(0, A.tv()))]
            sp[3] = oown(0)[:1]
        if p == 121:
            sp[0] = oown(0)[1:]
            sp[1] = [f"v_and_b32 v{t0}, 31, v1",
                     f"v_lshl_add_u32 v{t0}, v{t0}, 6, v{aWr}", f"v_add_u32 v{t0}, s{sM0}, v{t0}", f"v_add_u32 v{aOr}, {RING}, v{vL16}"]
            sp[2] = [f"ds_read_b128 {vr(xr+4*k,4)}, v{t0} offset:{2048+2048*(k>>1)+32*(k&1)}" for k in range(4)]
        if p == 122:
            def f0():
                A.wait_vm(tko[0])
                A(f"s_cmp_eq_u32 s{sBad}, 1\ns_cbranch_scc1 L_nf0"); oflag(0); A("L_nf0:"); A.vm -= 1
            sp[1] = [f0]
        if p == 124: sp[0], sp[1], sp[2], sp[3] = [opoll, lambda: tko.__setitem__("p", A.tv())], send(3)[:1], send(3)[1:2], send(3)[2:4]
        if p == 125:
            def c0():
                A(f"s_cmp_eq_u32 s{sBad}, 1\ns_cbranch_scc1 L_nc0"); odma(1, 0); ocheck(0, tko["p"])
                for hc, j in ((1, 1), (1, 2), (2, 0), (2, 1), (2, 2)): odma(hc, j)
                A("L_nc0:")
            sp[0], sp[2], sp[3] = send(3)[4:], recv(3), [c0]
        def run(items):
            for it in items: it() if callable(it) else A(it)
        ex(Sc, 0, 2)
        if prv:
            pv(prv[1], prv[0], 1, Sn)
            if last[prv[0]] == p - 1: freed.add((prv[0], 3))
        kvnext(1)
        run(sp[0])
        ex(Sc, 2, 5)
        if prv: su(prv[1], 1, Sn)
        ex(Sc, 5, 6)
        if nxt: qk(Sn, nxt[0], nxt[1], 0)
        run(bg2.get(p, []) + sp[1])
        ex(Sc, 6, 9)
        if nxt:
            qk(Sn, nxt[0], nxt[1], 1)
            if last[nxt[0]] == p + 1: freed.update({(nxt[0], 0), (nxt[0], 1)})
        if p < 8 or p > 100: kvnext(1)
        run(sp[2])
        ex(Sc, 9, 12)
        pv(q, t, 0, Sc)
        if last[t] == p: freed.add((t, 2))
        run(bgq.get(p, []) + sp[3])
        ex(Sc, 12, 15)
        su(q, 0, Sc)
        ex(Sc, 15, 16)
    assert not late
    A(f"s_cmp_eq_u32 s{sBad}, 1\ns_nop 0")
    su(1, 1, SB); pv(1, 31, 1, SB)
    A("s_cbranch_scc1 L_exact0\nL_back0:\ns_waitcnt vmcnt(0) lgkmcnt(0)\ns_barrier")
    exact(0, oa, 172)
    E("\n".join(scale(0, oa))); ostore(0, E); E("\n".join(oown(0)) + "\ns_waitcnt vmcnt(0) lgkmcnt(0)"); oflag(0, E)
    E(f"""s_mov_b32 s{sCNT}, {SPIN}
          L_ex0p:
          s_sub_u32 s{sCNT}, s{sCNT}, 1
          s_cbranch_scc1 L_ex0q
          {opoll}
          s_waitcnt vmcnt(0)
          v_cmp_eq_u32 vcc, -1, v{vFo}
          s_lshl_b64 vcc, vcc, 32
          s_cbranch_vccnz L_ex0p
          L_ex0q:""")
    for hc in (1, 2):
        for j in range(3): odma(hc, j, E)
    E("s_branch L_back0")
    stamp("attn")

    A.c("---- output projection: wave = 32 output columns (wo^T fragments in AGPRs); row tile 0, then row tile 1 ----")
    rtk = {}
    for n in range(8): A(oread(n)); rtk[n] = A.tl()
    aG, aDn, one, sw_ = 156, 152, 157, 158
    GW, DW = 0, 64
    hp, s4, aH, aSP, wf_, sc_, aSc, aXs, xu = 8, 88, 96, 97, 40, 98, 100, 101, 56
    aZ, aBx, aGs, aGl, aY, vL4, aXw, aAw = 136, 140, 141, 142, 143, 144, 145, 146
    sHn, sGs, sGl, sY, sOut, sSel = 71, 72, 73, 74, 75, 84
    def unpk(lst):
        out = []
        for l_ in lst:
            m_ = re.match(r"v_pk_(add|mul)_f32 v\[(\d+):\d+\], v\[\d+:\d+\], v\[(\d+):\d+\]", l_)
            if m_ and opt.get("unpk", 1):
                d_, s_ = int(m_.group(2)), int(m_.group(3))
                out += [f"v_{m_.group(1)}_f32 v{d_+i}, v{d_+i}, v{s_ + (i if m_.group(1) == 'add' else 0)}" for i in range(2)]
            else: out.append(l_)
        return out
    A("\n".join(merge(1)) + "\ns_cbranch_vccnz L_exact1\nL_back1:")
    fin1 = unpk(scale(1, O + 16))
    exact(1, O + 16, rcv); E("s_branch L_back1")
    pre = []
    for i in range(8): pre += [f"v_lshlrev_b32 v{oa+16+2*i}, 16, v{xr+8+i}", f"v_and_b32 v{oa+16+2*i+1}, 0xffff0000, v{xr+8+i}"]
    for i in range(8): pre += [f"v_lshlrev_b32 v{xu+2*i}, 16, v{xr+i}", f"v_and_b32 v{xu+2*i+1}, 0xffff0000, v{xr+i}"]
    prew = []
    for i in range(8): prew += [f"v_lshlrev_b32 v{wf_+2*i}, 16, v{wr+i}", f"v_and_b32 v{wf_+2*i+1}, 0xffff0000, v{wr+i}"]
    prew += [f"v_add_f32 v{sw_}, v{wf_}, v{wf_+1}"] + [f"v_add_f32 v{sw_}, v{sw_}, v{wf_+i}" for i in range(2, 16)]
    pre += f"""v_mov_b32 v{one}, 0x3f803f80
          v_lshrrev_b32 v{t0}, 4, v1
          v_bfe_u32 v{t1}, v1, 2, 2
          v_lshl_add_u32 v{t2}, v{t0}, 3, v{t1}
          v_and_b32 v{t0}, 1, v{t0}
          v_lshrrev_b32 v{t3}, 1, v{t1}
          v_lshl_or_b32 v{t3}, v{t0}, 1, v{t3}
          v_xor_b32 v{t3}, s{sW}, v{t3}
          v_lshlrev_b32 v{t3}, 5, v{t3}
          v_lshl_add_u32 v{aG}, v{t2}, 7, v{t3}
          v_and_b32 v{t3}, 3, v1
          v_lshl_add_u32 v{aG}, v{t3}, 3, v{aG}
          v_lshl_or_b32 v{t0}, v{t0}, 2, v{t1}
          s_lshl_b32 s{sT0}, s{sW}, 2
          v_xor_b32 v{t0}, s{sT0}, v{t0}
          v_lshlrev_b32 v{t0}, 5, v{t0}
          v_lshl_add_u32 v{t0}, v{t2}, 9, v{t0}
          v_lshl_add_u32 v{t0}, v{t3}, 3, v{t0}
          v_add_u32 v{aDn}, {L_D}, v{t0}""".split("\n") + [f"v_xor_b32 v{aDn+c}, {32*c}, v{aDn}" for c in range(1, 4)]
    pre2 = f"""v_and_b32 v{t0}, 31, v1
          v_lshlrev_b32 v{aSc}, 7, v{t0}
          v_mul_u32_u24 v{t0}, {HTS}, v{t0}
          s_lshl_b32 s{sT0}, s{sW}, 6
          v_add3_u32 v{aH}, v{t0}, v{aWr}, s{sT0}
          s_lshl_b32 s{sT0}, s{sW}, 10
          s_add_u32 s{sT0}, s{sT0}, {SP}
          v_add_u32 v{aSP}, s{sT0}, v{vL16}
          v_mov_b64 {vr(s4+4,2)}, 0
          v_mov_b32 v{s4+6}, 0
          v_mov_b32 v{s4+3}, v{sw_}
          v_mov_b32 v{s4+7}, v{sw_}
          s_lshl_b32 s64, s{sXG if opt.get('sc_xg', 1) else sHG}, 12
          s_add_u32 s64, s64, {WS_SC}
          s_lshl_b32 s82, s{sHG}, 5
          s_add_u32 s82, s82, s{sRB}
          s_lshl_b32 s82, s82, 7
          s_add_u32 s82, s82, {WS_SC}
          s_lshl_b32 s65, s{sRB}, 13
          s_add_u32 s65, s65, {WS_ST}
          s_add_u32 s66, s65, 4096
          s_lshl_b32 s67, s{sLID}, 10
          s_add_u32 s67, s67, {WS_ST}""".split("\n")
    pre3 = f"""v_bfe_u32 v{t1}, v1, 4, 1
          v_and_b32 v{t2}, 0xf0, v{vL16}
          v_lshl_add_u32 v{aXs}, v{t1}, 9, v{t2}
          v_and_b32 v{aXw}, 511, v{vL16}
          v_lshlrev_b32 v{aAw}, 1, v1
          v_lshlrev_b32 v{vL4}, 2, v1
          s_lshl_b32 s{sHn}, s{sKQ}, 10
          s_add_u32 s{sHn}, s{sHn}, {WS_HN}
          v_and_b32 v{aBx}, 48, v1
          v_and_b32 v{t1}, 15, v1
          v_lshl_add_u32 v{aGs}, v{t1}, 6, v{aBx}
          v_lshlrev_b32 v{t2}, 2, v{t1}
          v_lshl_add_u32 v{aGl}, v{aBx}, 3, v{t2}
          v_mov_b32 v{t3}, 128
          v_cmp_eq_u32 vcc, 0, v{t1}
          v_cmp_eq_u32 s[{sSel}:{sSel+1}], 1, v{t1}
          v_cndmask_b32 v{aZ}, v{t3}, v{aBx}, vcc
          v_cmp_eq_u32 vcc, 2, v{t1}
          v_cndmask_b32 v{aZ+1}, v{t3}, v{aBx}, s[{sSel}:{sSel+1}]
          v_and_b32 v{t2}, 1, v1
          v_cndmask_b32 v{aZ+2}, v{t3}, v{aBx}, vcc
          v_cmp_eq_u32 vcc, 3, v{t1}
          v_lshl_add_u32 v{aY}, v{t2}, 6, v{aBx}
          v_bfe_u32 v{t2}, v1, 1, 1
          v_cndmask_b32 v{aZ+3}, v{t3}, v{aBx}, vcc
          v_lshl_add_u32 v{aY}, v{t2}, 13, v{aY}
          s_lshl2_add_u32 s{sGs}, s{sLID}, s{sW}
          s_lshl_b32 s{sGs}, s{sGs}, 7
          s_add_u32 s{sGs}, s{sGs}, {WS_GU}
          s_andn2_b32 s{sGl}, s{sGs}, 0x7ff
          s_lshl2_add_u32 s{sY}, s{sKQ}, s{sW}
          s_lshl_b32 s{sY}, s{sY}, 7
          s_add_u32 s{sY}, s{sY}, s{sCB}
          s_lshl_b32 s{sY}, s{sY}, 7
          s_add_u32 s{sY}, s{sY}, {WS_Y}
          s_lshl_b32 s{sOut}, s{sHG}, 8
          s_add_u32 s{sOut}, s{sOut}, s{sXr}"""
    mrd = []
    for m in range(2):
        for s_ in range(8):
            for t in range(2): mrd.append(f"ds_read_b64_tr_b16 {ar(GW+32*m+4*s_+2*t,2)}, v{aG} offset:{32768*m+4096*s_+512*t}")
    for c in range(4):
        for s_ in range(2):
            for t in range(2): mrd.append(f"ds_read_b64_tr_b16 {ar(DW+8*c+4*s_+2*t,2)}, v{aDn+c} offset:{16384*s_+2048*t}")
    sh0 = [f"v_add_f32 v{oa+i}, v{oa+i}, v{xu+i}" for i in range(16)]
    sh0 += [f"v_cvt_pk_bf16_f32 v{hp+i}, v{oa+2*i}, v{oa+2*i+1}" for i in range(8)]
    sh0 += [f"v_add_f32 v{s4}, v{oa}, v{oa+1}", f"v_mul_f32 v{s4+1}, v{oa}, v{oa}", f"v_mul_f32 v{s4+2}, v{oa}, v{wf_}"]
    for i in range(1, 16):
        if i > 1: sh0.append(f"v_add_f32 v{s4}, v{s4}, v{oa+i}")
        sh0 += [f"v_fmac_f32 v{s4+1}, v{oa+i}, v{oa+i}", f"v_fmac_f32 v{s4+2}, v{oa+i}, v{wf_+i}"]
    shw = [f"ds_write_b128 v{aH}, {vr(hp+4*j,4)} offset:{HT + 32*j}" for j in range(2)]
    def cost(it):
        if it.strip().startswith("ds_write_b128"): return 20
        if it.strip().startswith("buffer_"): return 12
        return 8 if it.strip().startswith("v_rcp") else 4
    AH = 8
    dq = [(hc, j) for hc in range(3, 16) if hc != 8 for j in range(3)]
    bar = {3: 3, 4: 4, 5: 6, 7: 7, 9: 9, 10: 11, 12: 13, 14: 15}
    free = 7; ready = 7
    F1, P1, C1 = opt.get("o_f1", 22), opt.get("o_p1", 36), opt.get("o_c1", 46)
    own1 = oown(1)
    for n in range(128):
        if n + AH < 128 and (n + AH) % 8 == 0 and (n + AH) // 8 in bar:
            hc = (n + AH) // 8
            assert not dq or dq[0][0] > bar[hc], (n, dq)
            A(f"s_waitcnt vmcnt({A.vm - otk[bar[hc]]})\ns_barrier")
            free = max(free, hc + 6)
        if n in opt.get("ost", ()): stamp(f"n{n}")
        WS_ = 2 if n < 8 else opt.get("o_ws", 4)
        if n % WS_ == 0: A.wait_lg(rtk[n+WS_-1])
        A(omfma(n))
        bud = (24 if fin1 else opt.get("o_bud", 16)) - (4 if n % WS_ == WS_ - 1 else 0)
        if n + AH < 128: A(oread(n + AH)); rtk[n+AH] = A.tl(); bud -= 4
        if n == F1: A.wait_vm(tko[1]); oflag(1); continue
        if n == P1: A(opoll); tko["p"] = A.tv(); bud -= 12
        if n == C1: odma(*dq.pop(0)); ocheck(1, tko["p"]); ready = 15; odma(*dq.pop(0)); continue
        if n == 112: A(f"buffer_load_dwordx2 {vr(sc_,2)}, v{aSc}, {sr(WS,4)}, s64 offen sc1"); bud -= 12
        if not fin1 and 1 not in tko: ostore(1); tko[1] = A.tv(); continue
        if dq and dq[0][0] <= min(free, ready) and (n % 2 or dq[0][1] == 0 or n > C1) and (n < 4 or not fin1):
            bud -= 12 if dq[0][1] else 4
            odma(*dq.pop(0))
        if n >= 72 and mrd:
            for _ in range(2 if n < 80 else 1): A(mrd.pop(0)); bud -= 4
        for lst, lo in ((fin1, 0), (own1, 16), (pre, 9), (prew, 9), (pre2, 9), (sh0, 68), (shw if not sh0 else [], 104)):
            while lst and n >= lo and bud >= min(cost(lst[0]), 12):
                bud -= cost(lst[0]); A(lst.pop(0))
        if opt.get("dbg"): print(n, len(fin1), len(pre), len(prew), len(pre2), len(sh0), len(dq), bud)
        if n == 60: assert not pre
        if n == 67: assert not prew
        if n == 100: assert not pre2
    assert not (dq or mrd or pre2 or sh0 or shw or own1), (len(dq), len(mrd), len(pre2), len(sh0))
    stamp("omm")

    A.c("---- h = x + attention; LayerNorm-2 partial statistics ----")
    for i in range(8, 16): A(f"v_cvt_pk_bf16_f32 v{hp+i}, v{oa+2*i}, v{oa+2*i+1}")
    for i in range(8):
        A(f"""v_dot2c_f32_bf16 v{s4+4}, v{one}, v{hp+8+i}
              v_dot2c_f32_bf16 v{s4+5}, v{hp+8+i}, v{hp+8+i}
              v_dot2c_f32_bf16 v{s4+6}, v{wr+i}, v{hp+8+i}""")
    for j in range(2): A(f"ds_write_b128 v{aH}, {vr(hp+8+4*j,4)} offset:{HT + 32*HTS + 32*j}")
    for i in (3, 0, 1, 2): A(f"v_permlane32_swap_b32 v{s4+i}, v{s4+4+i}")
    for i in (0, 2): A(f"v_pk_add_f32 {vr(s4+i,2)}, {vr(s4+i,2)}, {vr(s4+4+i,2)}")
    A(f"ds_write_b128 v{aSP}, {vr(s4,4)}")
    A("s_waitcnt lgkmcnt(0)\ns_barrier")
    stamp("hstat")
    osc = opt.get("out_sc", " sc1")
    def wave_max(dst, src):
        return f"""v_max_f32_dpp v{dst}, v{src}, v{src} quad_perm:[1,0,3,2] row_mask:0xf bank_mask:0xf
              v_max_f32_dpp v{dst}, v{dst}, v{dst} quad_perm:[2,3,0,1] row_mask:0xf bank_mask:0xf
              v_max_f32_dpp v{dst}, v{dst}, v{dst} row_half_mirror row_mask:0xf bank_mask:0xf
              v_max_f32_dpp v{dst}, v{dst}, v{dst} row_mirror row_mask:0xf bank_mask:0xf
              v_mov_b32 v{t3}, v{dst}
              v_permlane16_swap_b32 v{dst}, v{t3}
              v_max_f32 v{dst}, v{dst}, v{t3}""".split("\n")
    def leader(dst):
        A("\n".join(wave_max(t0, sc_) + [f"v_cmp_eq_f32 vcc, v{t0}, v{sc_}", f"s_ff1_i32_b32 s{dst}, vcc_lo", f"s_max_i32 s{dst}, s{dst}, 0"]))
    A(f"s_cmp_eq_u32 s{sW}, 0\ns_cbranch_scc0 L_bulk")
    A.c("---- wave 0: statistics across the row-block group, candidate row, global arg-max ----")
    pa, mr, r2, hr, hn, orow, ab, xs_ = 40, 72, 74, 75, 76, 77, 78, 80
    for w in range(4): A(f"ds_read_b128 {vr(pa+4*w,4)}, v{vL16} offset:{SP+1024*w}")
    A("s_waitcnt lgkmcnt(0)")
    for a_, b_ in ((0, 4), (8, 12), (0, 8)):
        for i in (0, 2): A(f"v_pk_add_f32 {vr(pa+a_+i,2)}, {vr(pa+a_+i,2)}, {vr(pa+b_+i,2)}")
    for i in range(4): A(f"v_min_u32 v{pa+i}, -2, v{pa+i}")
    both_paths(lambda sc: A(f"buffer_store_dwordx4 {vr(pa,4)}, v{vL16}, {sr(WS,4)}, s67 offen{sc}"))
    A(pre3 + f"\nv_mov_b32 v{t1}, 0\nds_write_b16 v{aAw}, v{t1} offset:{ACT+128}")
    def body():
        for g in range(8): A(f"buffer_load_dwordx4 {vr(pa+4*g,4)}, v{vL16}, {sr(WS,4)}, s{65+(g>>2)} offen offset:{1024*(g&3)} sc1")
        A("s_waitcnt vmcnt(4)")
        for i in range(0, 16, 2): A(f"v_max3_u32 v{t0}, v{pa+i}, v{pa+i+1}, v{t0 if i else pa}")
        for a_, b_ in ((0, 4), (8, 12), (0, 8)):
            for i in (0, 2): A(f"v_pk_add_f32 {vr(pa+a_+i,2)}, {vr(pa+a_+i,2)}, {vr(pa+b_+i,2)}")
        A("s_waitcnt vmcnt(0)")
        for i in range(16, 32, 2): A(f"v_max3_u32 v{t0}, v{pa+i}, v{pa+i+1}, v{t0}")
        A(f"v_cmp_eq_u32 vcc, -1, v{t0}")
    poll(body)
    stamp("st2")
    for a_, b_ in ((16, 20), (24, 28), (0, 16), (0, 24)):
        for i in (0, 2): A(f"v_pk_add_f32 {vr(pa+a_+i,2)}, {vr(pa+a_+i,2)}, {vr(pa+b_+i,2)}")
    ln_chain(pa, pa+1, mr, mr+1, t0)
    A(f"""v_fma_f32 v{r2}, -v{mr}, v{pa+3}, v{pa+2}
          v_mul_f32 v{r2}, v{mr+1}, v{r2}
          v_max_f32 v{r2}, 0xff800000, v{r2}
          s_lshl_b32 s66, s{sRB}, 6
          s_mov_b32 m0, s{sRB}""")
    fill = [f"v_add_f32 v{ab}, 1.0, v{mr+1}", f"v_mul_f32 v{ab+1}, -v{mr}, v{mr+1}", f"v_lshlrev_b32 v{t2}, 3, v1", f"ds_write_b64 v{t2}, {vr(ab,2)} offset:{MR}",
            f"s_lshl_b32 s67, s{sLID}, 9", f"s_add_u32 s67, s67, {WS_HN}"]
    for i, l_ in enumerate(wave_max(pa, r2)):
        A(l_)
        if i < 3: A(fill.pop(0)); A(fill.pop(0))
    sB, sMm, sRs, sR, sG, sG2, sRow = 76, 77, 78, 79, 68, 69, 70
    A(f"""v_mov_b32 v{t3}, v{pa}
          v_permlane32_swap_b32 v{pa}, v{t3}
          v_max_f32 v{pa}, v{pa}, v{t3}
          v_cmp_eq_f32 vcc, v{pa}, v{r2}
          s_ff1_i32_b64 s{sB}, vcc
          s_add_u32 s66, s66, s{sB}
          v_mov_b32 v{pa+1}, s66
          s_mov_b64 exec, 1
          buffer_store_dwordx2 {vr(pa,2)}, v{t1}, {sr(WS,4)}, s82 offen sc1
          ds_write_b32 v{t1}, v{pa+1} offset:{MR+512}
          s_mov_b64 exec, -1
          s_mul_i32 s{sT0}, s{sB}, {HTS}
          v_add_u32 v{t2}, s{sT0}, v{vL4}
          ds_read_b32 v{hr}, v{t2} offset:{HT}
          v_readlane_b32 s{sMm}, v{mr}, s{sB}
          v_readlane_b32 s{sRs}, v{mr+1}, s{sB}
          v_readfirstlane_b32 s{sR}, v{pa}
          s_waitcnt lgkmcnt(0)
          s_barrier
          v_lshlrev_b32 v{t0}, 16, v{hr}
          v_and_b32 v{t1}, 0xffff0000, v{hr}
          v_subrev_f32 v{t2}, s{sMm}, v{t0}
          v_subrev_f32 v{t3}, s{sMm}, v{t1}
          v_cvt_pk_bf16_f32 v{t3}, v{t2}, v{t3}
          v_lshlrev_b32 v{t2}, 16, v{t3}
          v_and_b32 v{t3}, 0xffff0000, v{t3}
          v_mul_f32 v{t2}, s{sRs}, v{t2}
          v_mul_f32 v{t3}, s{sRs}, v{t3}
          v_cvt_pk_bf16_f32 v{hn}, v{t2}, v{t3}
          v_min_u32 v{hn}, -2, v{hn}
          buffer_store_dword v{hn}, v{vL4}, {sr(WS,4)}, s67 offen sc1
          v_writelane_b32 v{sc_}, s{sR}, m0""")
    stamp("cand")
    A.c("global arg-max over the 32 candidates; the leader's x_sel slice is fetched with every poll")
    leader(sG2)
    def body():
        A(f"""s_mov_b32 s{sG}, s{sG2}
              s_lshl_b32 s{sRow}, s{sG}, 12
              s_add_u32 s{sT1}, s{sRow}, s{sHn}
              buffer_load_dwordx2 {vr(sc_,2)}, v{aSc}, {sr(WS,4)}, s64 offen sc1
              buffer_load_dwordx4 {vr(xs_,4)}, v{aXs}, {sr(WS,4)}, s{sT1} offen sc1
              s_waitcnt vmcnt(1)""")
        leader(sG2)
        A(f"v_max_u32 v{t1}, v{sc_}, v{sc_+1}\ns_waitcnt vmcnt(0)\nds_write_b128 v{aXw}, {vr(xs_,4)} offset:{XS}")
        any_sentinel([t1, xs_, xs_+1, xs_+2, xs_+3], t1)
        A(f"""s_cmp_lg_u32 s{sG}, s{sG2}
              s_cselect_b64 s[{EX}:{EX+1}], -1, 0
              s_or_b64 vcc, vcc, s[{EX}:{EX+1}]""")
    poll(body)
    stamp("g1")
    A(f"""s_cmp_eq_u32 s{sRED}, 1
          s_cbranch_scc1 L_red
          s_branch L_moe""")

    A.c("---- waves 1..3: out = h + LN(h); the wave that stores the candidate row publishes its h once that store is done ----")
    hv, mv, u, row, aHt, aMr, aOut, bb, hc = 40, 64, 80, 88, 89, 90, 91, 92, 93
    A("L_bulk:\n" + pre3)
    A(f"""s_sub_u32 s64, s{sW}, 1
          s_lshl_b32 s64, s64, 2
          v_lshrrev_b32 v{row}, 4, v1
          v_add_u32 v{row}, s64, v{row}
          v_and_b32 v{t0}, 0xf0, v{vL16}
          v_lshl_add_u32 v{aOut}, v{row}, 11, v{t0}
          v_mul_u32_u24 v{aHt}, {HTS}, v{row}
          v_add_u32 v{aHt}, v{aHt}, v{t0}
          v_lshlrev_b32 v{aMr}, 3, v{row}
          v_mov_b32 v{t1}, 0
          s_lshl_b32 s67, s{sLID}, 9
          s_add_u32 s67, s67, {WS_HN}""")
    for i in range(6): A(f"ds_read_b128 {vr(hv+4*i,4)}, v{aHt} offset:{HT+12*HTS*i}")
    if opt.get("wb_b"):
        A.c("one wave per XCD writes back the spent hand-over lines while it waits, so that the end of the launch need not")
        A(f"""s_lshl2_add_u32 s{sT1}, s{sKQ}, s{sW}
              s_lshl1_add_u32 s{sT1}, s{sT1}, s{sRED}
              s_cmp_eq_u32 s{sT1}, 7
              s_cbranch_scc0 L_nowb
              buffer_wbl2 sc1
              L_nowb:""")
    A(f"s_barrier\nds_read_b32 v{bb}, v{t1} offset:{MR+512}")
    for i in range(6): A(f"ds_read_b64 {vr(mv+2*i,2)}, v{aMr} offset:{MR+96*i}")
    A(f"""s_waitcnt lgkmcnt(0)
          v_readfirstlane_b32 s65, v{bb}
          s_and_b32 s65, s65, 63
          s_mul_i32 s66, s65, {HTS}
          v_add_u32 v{t2}, s66, v{vL4}
          ds_read_b32 v{hc}, v{t2} offset:{HT}
          v_subrev_u32 v{row}, s65, v{row}""")
    for i in range(6):
        if i == 5: A(f"s_cmp_eq_u32 s{sW}, 1\ns_cbranch_scc0 L_bulkd")
        h = hv + 4 * i
        for k in range(4): A(f"v_lshlrev_b32 v{u+2*k}, 16, v{h+k}\nv_and_b32 v{u+2*k+1}, 0xffff0000, v{h+k}")
        if osc != " sc1": A(f"v_cmp_eq_u32 vcc, {-12*i}, v{row}")
        for k in range(4): A(f"v_pk_fma_f32 {vr(u+2*k,2)}, {vr(u+2*k,2)}, {vr(mv+2*i,2)}, {vr(mv+2*i,2)} op_sel:[0,0,1] op_sel_hi:[1,0,1]")
        for k in range(4): A(f"v_cvt_pk_bf16_f32 v{h+k}, v{u+2*k}, v{u+2*k+1}")
        if osc == " sc1":
            A(f"buffer_store_dwordx4 {vr(h,4)}, v{aOut}, {sr(OUT,4)}, s{sOut} offen sc1")
        else:
            lab = A.label("L_nc")
            A(f"""s_cbranch_vccz {lab}
                  s_mov_b64 exec, vcc
                  buffer_store_dwordx4 {vr(h,4)}, v{aOut}, {sr(OUT,4)}, s{sOut} offen sc1
                  s_not_b64 exec, vcc
                  {lab}:
                  buffer_store_dwordx4 {vr(h,4)}, v{aOut}, {sr(OUT,4)}, s{sOut} offen{osc}
                  s_mov_b64 exec, -1""")
        A(f"s_add_u32 s{sOut}, s{sOut}, {12*2048}")
    A(f"""L_bulkd:
          s_lshr_b32 s65, s65, 2
          s_mul_i32 s66, s65, 43
          s_lshr_b32 s66, s66, 7
          s_mul_i32 s66, s66, 3
          s_sub_u32 s65, s65, s66
          s_add_u32 s65, s65, 1
          s_cmp_eq_u32 s65, s{sW}
          s_cselect_b32 s79, 1, 0
          s_waitcnt lgkmcnt(0)
          v_min_u32 v{hc}, -2, v{hc}
          s_cmp_eq_u32 s{sRED}, 1
          s_cbranch_scc1 L_hpub""")

    A.c("---- routed FFN: gate/up partials for 64 columns x 256 k ----")
    xb, ga = 172, 104
    A("L_moe:\ns_waitcnt lgkmcnt(0)\ns_barrier")
    tks = []
    for s_ in range(8): A(f"ds_read_b128 {vr(xb+4*s_,4)}, v{aBx} offset:{XS+64*s_}"); tks.append(A.tl())
    for s_ in range(8):
        A.wait_lg(tks[s_])
        for m in range(2): A(f"v_mfma_f32_16x16x32_bf16 {vr(ga+4*m,4)}, {ar(GW+32*m+4*s_,4)}, {vr(xb+4*s_,4)}, " + (vr(ga+4*m,4) if s_ else "0"))
    A("s_mov_b32 exec_lo, 0x00030003\ns_mov_b32 exec_hi, 0x00030003")
    for i in range(4): A(f"v_cndmask_b32 v{ga+i}, v{ga+i}, v{ga+4+i}, s[{sSel}:{sSel+1}]")
    for i in range(4): A(f"v_min_u32 v{ga+i}, -2, v{ga+i}")
    both_paths(lambda sc: A(f"buffer_store_dwordx4 {vr(ga,4)}, v{aGs}, {sr(WS,4)}, s{sGs} offen{sc}"))
    A("s_mov_b64 exec, -1")
    stamp("gu")
    A(f"s_cmp_eq_u32 s{sW}, 0\ns_cbranch_scc1 L_silu")
    A(f"""L_hpub:
          s_cmp_eq_u32 s79, 1
          s_cbranch_scc0 L_nohp
          s_waitcnt vmcnt(0)
          buffer_store_dword v{hc}, v{vL4}, {sr(WS,4)}, s67 offen offset:256 sc1
          L_nohp:
          s_cmp_eq_u32 s{sRED}, 1
          s_cbranch_scc1 L_fin2
          s_branch L_act""")
    A.c("wave 0: sum the four K quarters, SwiGLU -> LDS")
    A("L_silu:")
    def body():
        for k in range(4):
            for m in range(2): A(f"buffer_load_dword v{pa+2*k+m}, v{aGl}, {sr(WS,4)}, s{sGl} offen offset:{512*k+64*m} sc1")
        A("s_waitcnt vmcnt(0)"); any_sentinel(range(pa, pa+8), t2)
    poll(body)
    stamp("gu2")
    A(f"""v_pk_add_f32 {vr(pa,2)}, {vr(pa,2)}, {vr(pa+2,2)}
          v_pk_add_f32 {vr(pa+4,2)}, {vr(pa+4,2)}, {vr(pa+6,2)}
          v_pk_add_f32 {vr(pa,2)}, {vr(pa,2)}, {vr(pa+4,2)}
          v_cvt_pk_bf16_f32 v{pa+1}, v{pa}, v{pa+1}
          v_lshlrev_b32 v{pa}, 16, v{pa+1}
          v_mul_f32 v{t2}, {f32(-math.log2(math.e))}, v{pa}
          v_exp_f32 v{t2}, v{t2}
          v_and_b32 v{pa+1}, 0xffff0000, v{pa+1}
          v_add_f32 v{t2}, 1.0, v{t2}
          v_rcp_f32 v{t2}, v{t2}
          v_mul_f32 v{pa}, v{pa}, v{t2}""")
    rbf(pa, pa)
    A(f"""v_mul_f32 v{pa}, v{pa}, v{pa+1}
          v_cvt_pk_bf16_f32 v{pa}, v{pa}, v{pa}
          ds_write_b16 v{aAw}, v{pa} offset:{ACT}
          s_waitcnt lgkmcnt(0)
          L_act:
          s_barrier""")
    tks = []
    for c in range(4):
        for s_ in range(2): A(f"ds_read_b128 {vr(xb+8*c+4*s_,4)}, v{aZ+c} offset:{ACT+64*s_}"); tks.append(A.tl())
    for i in range(8):
        A.wait_lg(tks[i])
        A(f"v_mfma_f32_16x16x32_bf16 {vr(ga,4)}, {ar(DW+4*i,4)}, {vr(xb+4*i,4)}, " + (vr(ga,4) if i else "0"))
    A("s_mov_b32 exec_lo, 0x000f000f\ns_mov_b32 exec_hi, 0x000f000f")
    for i in range(4): A(f"v_min_u32 v{ga+i}, -2, v{ga+i}")
    A(f"""buffer_store_dwordx4 {vr(ga,4)}, v{aY}, {sr(WS,4)}, s{sY} offen sc1
          s_mov_b64 exec, -1""")
    stamp("y")
    A("s_branch L_fin2")

    A.c("---- finisher workgroups (wave 0): sum 56 partials for 32 columns, finish the routed row ----")
    hh, sg, hf = 84, 88, 104
    A("L_red:")
    if opt.get("wb_r"):
        A.c("one wave per XCD writes back L2 while it waits for the FFN, so that the end of the launch need not")
        A(f"""s_cmp_eq_u32 s{sKQ}, 0
              s_cbranch_scc0 L_nowb
              buffer_wbl2 sc1
              L_nowb:""")
    A(f"""s_lshl_b32 s78, s{sCB}, 6
          s_and_b32 s77, s78, 0xff
          s_andn2_b32 s76, s78, 0xff
          s_lshl1_add_u32 s76, s76, s77
          s_add_u32 s76, s76, s{sRow}
          s_add_u32 s76, s76, {WS_HN}
          v_readlane_b32 s{sRow}, v{sc_+1}, s{sG}
          v_and_b32 v{t1}, 7, v1
          v_lshlrev_b32 v{t1}, 3, v{t1}""")
    rbf(sg, t0)
    A(f"""v_mul_f32 v{sg}, {f32(-math.log2(math.e))}, v{sg}
          v_exp_f32 v{sg}, v{sg}
          s_lshl_b32 s64, s{sCB}, 13
          s_add_u32 s64, s64, {WS_Y}
          v_add_f32 v{sg}, 1.0, v{sg}
          v_rcp_f32 v{sg}, v{sg}
          s_add_u32 s65, s64, 4096
          s_and_b32 s{sRow}, s{sRow}, 2047
          s_lshl_b32 s{sRow}, s{sRow}, 11
          s_add_u32 s{sRow}, s{sRow}, s78""")
    rbf(sg, sg)
    def body():
        A(f"""buffer_load_dwordx2 {vr(hh,2)}, v{t1}, {sr(WS,4)}, s76 offen sc1
              buffer_load_dwordx2 {vr(hh+2,2)}, v{t1}, {sr(WS,4)}, s76 offen offset:256 sc1
              s_waitcnt vmcnt(0)""")
        any_sentinel(range(hh, hh+4), t0)
    poll(body)
    for k in range(4): A(f"v_lshlrev_b32 v{hf+2*k}, 16, v{hh+k}\nv_and_b32 v{hf+2*k+1}, 0xffff0000, v{hh+k}")
    def body():
        for k in range(7): A(f"buffer_load_dwordx4 {vr(pa+4*k,4)}, v{vL16}, {sr(WS,4)}, s{64+(k>>2)} offen offset:{1024*(k&3)} sc1")
        A("s_waitcnt vmcnt(3)")
        for i in range(0, 16, 2): A(f"v_max3_u32 v{t0}, v{pa+i}, v{pa+i+1}, v{t0 if i else pa}")
        for a_, b_ in ((0, 4), (8, 12), (0, 8)):
            for i in (0, 2): A(f"v_pk_add_f32 {vr(pa+a_+i,2)}, {vr(pa+a_+i,2)}, {vr(pa+b_+i,2)}")
        A("s_waitcnt vmcnt(0)")
        for i in range(16, 28, 2): A(f"v_max3_u32 v{t0}, v{pa+i}, v{pa+i+1}, v{t0}")
        A(f"v_cmp_eq_u32 vcc, -1, v{t0}")
    poll(body)
    stamp("yrdy")
    for a_, b_ in ((16, 20), (0, 24), (0, 16)):
        for i in (0, 2): A(f"v_pk_add_f32 {vr(pa+a_+i,2)}, {vr(pa+a_+i,2)}, {vr(pa+b_+i,2)}")
    for i in range(4): A(f"v_add_f32_dpp v{pa+i}, v{pa+i}, v{pa+i} row_ror:8 row_mask:0xf bank_mask:0xf")
    for sw in ("16", "32"):
        for i in (0, 2): A(f"v_mov_b64 {vr(pa+4+i,2)}, {vr(pa+i,2)}")
        for i in range(4): A(f"v_permlane{sw}_swap_b32 v{pa+i}, v{pa+4+i}")
        for i in (0, 2): A(f"v_pk_add_f32 {vr(pa+i,2)}, {vr(pa+i,2)}, {vr(pa+4+i,2)}")
    def round4():
        for k in range(2): A(f"v_cvt_pk_bf16_f32 v{pa+4+k}, v{pa+2*k}, v{pa+2*k+1}")
        for k in range(2): A(f"v_lshlrev_b32 v{pa+2*k}, 16, v{pa+4+k}\nv_and_b32 v{pa+2*k+1}, 0xffff0000, v{pa+4+k}")
    round4()
    for i in (0, 2): A(f"v_pk_mul_f32 {vr(pa+i,2)}, {vr(pa+i,2)}, {vr(sg,2)} op_sel_hi:[1,0]")
    round4()
    for i in (0, 2): A(f"v_pk_add_f32 {vr(pa+i,2)}, {vr(pa+i,2)}, {vr(hf+i,2)}")
    round4()
    for i in (0, 2): A(f"v_pk_add_f32 {vr(pa+i,2)}, {vr(pa+i,2)}, {vr(hf+4+i,2)}")
    A("s_mov_b64 exec, 0xff")
    for k in range(2): A(f"v_cvt_pk_bf16_f32 v{pa+4+k}, v{pa+2*k}, v{pa+2*k+1}")
    A(f"""buffer_store_dwordx2 {vr(pa+4,2)}, v{t1}, {sr(OUT,4)}, s{sRow} offen{opt.get('fin_sc', '')}
          s_mov_b64 exec, -1""")
    A("L_fin2:")
    if probe:
        A("s_waitcnt vmcnt(0)")
        stamp("end")
        A("""s_add_u32 s101, s101, 7000
              L_probe:
              s_memrealtime s[98:99]
              s_waitcnt lgkmcnt(0)
              s_sub_u32 s98, s98, s101
              s_cmp_lt_i32 s98, 0
              s_cbranch_scc1 L_probe""")
    if stamps:
        A("s_waitcnt vmcnt(0)")
        stamp("end")
        A(f"""s_lshl_b32 s64, s2, 2
              s_add_u32 s64, s64, s{sW}
              s_lshl_b32 s64, s64, 8
              s_add_u32 s64, s64, {WS_TS}
              v_lshlrev_b32 v{t0}, 2, v1
              buffer_store_dword v255, v{t0}, {sr(WS,4)}, s64 offen""")
    A("s_endpgm")
    A.lines += cold.lines + E.lines
    A("L_end:\ns_endpgm")
    lines, added = fix_hazards(A.lines, opt.get("verbose", False))
    opt["nops_added"] = added; opt["vgpr_high"] = V.high
    head = open(f"cdna_kernels/{NAME}.s.ref").read().split("; Override launch")[0] if opt.get("head", True) else ""
    return head + f"""; @launch grid=(256,1,1) block=(256,1,1) lds=163840
.amdgcn_target "amdgcn-amd-amdhsa--gfx950"
.text
.globl {NAME}_kernel
.p2align 8
.type {NAME}_kernel,@function
{NAME}_kernel:
""" + "\n".join(lines) + f"""
.section .rodata,"a"
.p2align 6
.amdhsa_kernel {NAME}_kernel
  .amdhsa_next_free_vgpr 512
  .amdhsa_next_free_sgpr 102
  .amdhsa_accum_offset 256
  .amdhsa_group_segment_fixed_size 0
  .amdhsa_kernarg_size 104
  .amdhsa_user_sgpr_count 2
  .amdhsa_user_sgpr_kernarg_segment_ptr 1
  .amdhsa_system_sgpr_workgroup_id_x 1
.end_amdhsa_kernel
"""

if __name__ == "__main__":
    opt = {}
    out = f"cdna_kernels/{NAME}.s"
    for a in sys.argv[1:]:
        k, _, v = a.partition("=")
        if k == "out": out = v
        else: opt[k] = eval(v) if v else True
    s = build(opt)
    open(out, "w").write(s)
    print({k: v for k, v in opt.items()}, len(s))
```
